```python
import torch

def _softmax(x, axis=-1):
    return torch.softmax(x, dim=axis)

def _gelu(x):
    return torch.nn.functional.gelu(x, approximate='tanh')

def _silu(x):
    return torch.nn.functional.silu(x)

def _sigmoid(x):
    return torch.sigmoid(x)

def _layernorm(x, axis=-1, eps=1e-05):
    m = x.mean(dim=axis, keepdim=True)
    v = x.var(dim=axis, keepdim=True, unbiased=False)
    return (x - m) / torch.sqrt(v + eps)

def _scatter_add(tgt, idx, src, axis=0):
    return tgt.clone().index_add_(axis, idx, src)

def _segment_sum(src, seg, n):
    out = torch.zeros((n,) + src.shape[1:], dtype=src.dtype)
    return out.index_add_(0, seg, src)

def _pad(x, pw):
    flat = tuple((v for pair in reversed(pw) for v in pair))
    return torch.nn.functional.pad(x, flat)
kernel_name = 'adaLN_cond__memory_aug_recurrent_mem_tr__swiglu_ffn__prompt'

def setup_inputs():

    _w = lambda a: (lambda t: t.to(torch.bfloat16) if t.is_floating_point() else t)(torch.as_tensor(a))

    def _A_setup():
        B, S, Dm = (1, 2048, 576)
        H, Dh = (32, 128)
        M, seg = (8, 32)
        seg = min(seg, S)
        S = S // seg * seg
        return {'x': _w((lambda *s: torch.randn(*s, dtype=torch.bfloat16) * 0.05)(B, S, Dm)), 'mem0': _w((lambda *s: torch.randn(*s, dtype=torch.bfloat16) * 0.4)(B, M, Dm)), 'Wq': _w((lambda *s: torch.randn(*s, dtype=torch.bfloat16) * 3.2)(Dm, H, Dh) * Dm ** (-0.5)), 'Wk': _w((lambda *s: torch.randn(*s, dtype=torch.bfloat16) * 3.2)(Dm, H, Dh) * Dm ** (-0.5)), 'Wv': _w((lambda *s: torch.randn(*s, dtype=torch.bfloat16) * 0.4)(Dm, H, Dh) * Dm ** (-0.5)), 'Wo': _w((lambda *s: torch.randn(*s, dtype=torch.bfloat16) * 0.4)(H, Dh, Dm) * (H * Dh) ** (-0.5)), 'seg_len': seg}
    _A_in = _A_setup()

    def _B_setup():
        B, S, D, F = (1, 2048, 576, 4608)
        return {'x': _w((lambda *s: torch.randn(*s, dtype=torch.bfloat16) * 0.05)(B, S, D)), 'w_gate': _w((lambda *s: torch.randn(*s, dtype=torch.bfloat16) * 0.05)(D, F)), 'w_up': _w((lambda *s: torch.randn(*s, dtype=torch.bfloat16) * 0.05)(D, F)), 'w_down': _w((lambda *s: torch.randn(*s, dtype=torch.bfloat16) * 0.05)(F, D))}
    _B_in = _B_setup()
    return {'A_x': _A_in['x'], 'A_mem0': _A_in['mem0'], 'A_Wq': _A_in['Wq'], 'A_Wk': _A_in['Wk'], 'A_Wv': _A_in['Wv'], 'A_Wo': _A_in['Wo'], 'A_seg_len': _A_in['seg_len'], 'B_x': _B_in['x'], 'B_w_gate': _B_in['w_gate'], 'B_w_up': _B_in['w_up'], 'B_w_down': _B_in['w_down'], 'c': _w((lambda *s: torch.randn(*s, dtype=torch.bfloat16) * 0.1)(1, 576) * 8.0), 'w_mod': _w((lambda *s: torch.randn(*s, dtype=torch.bfloat16) * 0.1)(576, 6 * 576) * 576 ** (-0.5) * 8.0)}

def reference(A_x, A_mem0, A_Wq, A_Wk, A_Wv, A_Wo, A_seg_len, B_x, B_w_gate, B_w_up, B_w_down, c, w_mod):

    def _A_ref(x, mem0, Wq, Wk, Wv, Wo, seg_len):
        B, S, Dm = x.shape
        H, Dh = (Wq.shape[1], Wq.shape[2])
        M = mem0.shape[1]
        scale = Dh ** (-0.5)
        n_seg = S // seg_len
        L = M + seg_len
        idx = torch.arange(L)
        mask = (idx[:, None] < M) | (idx[:, None] >= idx[None, :])
        mem = mem0
        outs = []
        for s in range(n_seg):
            xs = x[:, s * seg_len:(s + 1) * seg_len, :].clone()
            h = torch.concatenate([mem, xs], axis=1)
            q = torch.einsum('btd,dhe->bhte', h, Wq)
            k = torch.einsum('btd,dhe->bhte', h, Wk)
            v = torch.einsum('btd,dhe->bhte', h, Wv)
            scores = torch.einsum('bhqe,bhke->bhqk', q, k) * scale
            scores = torch.where(mask[None, None], scores, -1000000000.0)
            p = _softmax(scores, axis=-1)
            o = torch.einsum('bhqk,bhke->bhqe', p, v)
            o = torch.einsum('bhte,hed->btd', o, Wo)
            mem = o[:, :M, :].clone()
            outs.append(o[:, M:, :])
        return torch.concatenate(outs, axis=1)

    def _B_ref(x, w_gate, w_up, w_down):
        g = _silu(x @ w_gate)
        u = x @ w_up
        return g * u @ w_down
    x = A_x
    mod = (_silu(c) @ w_mod).reshape(c.shape[0], 6, 1, -1)
    sa, ca, ga, sb, cb, gb = (mod[:, 0].clone(), mod[:, 1].clone(), mod[:, 2].clone(), mod[:, 3].clone(), mod[:, 4].clone(), mod[:, 5].clone())
    h = _layernorm(x, axis=-1) * (1 + ca) + sa
    x = x + ga * _A_ref(h, A_mem0, A_Wq, A_Wk, A_Wv, A_Wo, A_seg_len)
    h = _layernorm(x, axis=-1) * (1 + cb) + sb
    x = x + gb * _B_ref(h, B_w_gate, B_w_up, B_w_down)
    return x
```

```python
import re, sys

def v(n, c=1):
    return f"v{n}" if c == 1 else f"v[{n}:{n+c-1}]"
def a(n, c=1):
    return f"a{n}" if c == 1 else f"a[{n}:{n+c-1}]"
def s(n, c=1):
    return f"s{n}" if c == 1 else f"s[{n}:{n+c-1}]"

class Asm:
    def __init__(self):
        self.lines = []
        self.nlab = 0
    def __call__(self, txt):
        for ln in txt.split('\n'):
            ln = ln.strip()
            if ln:
                self.lines.append(ln)
    def label(self, name):
        self.lines.append(name + ':')
    def newlab(self, base='L'):
        self.nlab += 1
        return f"{base}_{self.nlab}"
    def c(self, txt):
        self.lines.append('; ' + txt)
    def nop(self, n):
        while n > 0:
            k = min(n, 16)
            self.lines.append(f"s_nop {k-1}")
            n -= k
    def text(self):
        out = []
        for ln in self.lines:
            if ln.endswith(':') or ln.startswith('.') or ln.startswith(';'):
                out.append(ln)
            else:
                out.append('  ' + ln)
        return '\n'.join(out) + '\n'

_reg = re.compile(r'^(-|\|)?(abs\()?([vas])(\d+|\[(\d+):(\d+)\])\)?\|?$')
def regs(tok):
    tok = tok.strip()
    if tok in ('vcc',): return {('s', 106), ('s', 107)}
    if tok == 'vcc_lo': return {('s',106)}
    if tok == 'vcc_hi': return {('s',107)}
    if tok == 'exec': return {('s', 126), ('s', 127)}
    if tok == 'm0': return {('s', 124)}
    m = _reg.match(tok)
    if not m: return set()
    f = m.group(3)
    if m.group(5) is not None:
        lo, hi = int(m.group(5)), int(m.group(6))
    else:
        lo = hi = int(m.group(4))
    return {(f, i) for i in range(lo, hi + 1)}

TRANS = ('v_exp_f32', 'v_log_f32', 'v_rcp_f32', 'v_rsq_f32', 'v_sqrt_f32', 'v_sin_f32', 'v_cos_f32')
class Ins:
    def __init__(self, txt, idx):
        self.txt = txt; self.idx = idx
        t = txt.split(';')[0].strip()
        parts = t.split(None, 1)
        self.op = parts[0]
        rest = parts[1] if len(parts) > 1 else ''
        rest = re.sub(r'(quad_perm|op_sel|op_sel_hi|neg_lo|neg_hi):\[[^\]]*\]', lambda m: m.group(0).replace(',', '/'), rest)
        ops = [o.strip() for o in rest.split(',')] if rest else []
        mods = []
        if ops:
            lp = ops[-1].split()
            ops[-1] = lp[0] if lp else ''
            mods = lp[1:]
        self.ops = ops; self.mods = mods
        self.rd = set(); self.wr = set()
        self.kind = 'other'
        self.states = 1
        self.srcC = set(); self.srcAB = set(); self.passes = 0
        op = self.op
        R = lambda i: regs(ops[i]) if i < len(ops) else set()
        if op == 's_nop':
            self.states = int(ops[0], 0) + 1; self.kind = 'nop'
        elif op.startswith('v_mfma') or op.startswith('v_smfmac'):
            self.kind = 'mfma'
            self.wr = R(0)
            self.srcAB = R(1) | R(2)
            if op.startswith('v_smfmac'):
                self.srcC = R(0); self.srcAB |= R(3)
            else:
                self.srcC = R(3)
            self.rd = self.srcAB | self.srcC
            self.passes = 8 if '32x32' in op else 4
        elif op.startswith('v_'):
            self.kind = 'valu'
            if op.startswith('v_permlane'):
                self.rd = R(0) | R(1); self.wr = R(0) | R(1)
            elif op.startswith('v_cmp'):
                self.wr = R(0); self.rd = R(1) | R(2)
                if op.startswith('v_cmpx'): self.wr |= regs('exec')
            elif '_co_' in op:
                self.wr = R(0) | R(1)
                for i in range(2, len(ops)): self.rd |= R(i)
            else:
                self.wr = R(0)
                for i in range(1, len(ops)): self.rd |= R(i)
                if op.startswith('v_fmac') or op.startswith('v_dot2c') or op.startswith('v_writelane'): self.rd |= R(0)
                if 'dpp' in op or any(m.startswith('row_') or m.startswith('quad_perm') for m in mods):
                    self.kind = 'valu'; self.dpp = True; self.rd |= R(0)
        elif op.startswith('ds_'):
            self.kind = 'ds'
            if op.startswith('ds_read') or op.startswith('ds_bpermute') or op.startswith('ds_swizzle'):
                self.wr = R(0)
                for i in range(1, len(ops)): self.rd |= R(i)
            else:
                for i in range(len(ops)): self.rd |= R(i)
        elif op.startswith('buffer_') or op.startswith('global_'):
            self.kind = 'vmem'
            if op in ('buffer_inv', 'buffer_wbl2'):
                pass
            elif 'load' in op and 'lds' in mods:
                for i in range(len(ops)): self.rd |= R(i)
                self.rd |= regs('m0'); self.ldsdma = True
            elif 'load' in op:
                self.wr = R(0)
                for i in range(1, len(ops)): self.rd |= R(i)
            else:
                for i in range(len(ops)): self.rd |= R(i)
                if 'atomic' in op and 'sc0' in mods: self.wr = R(0)
                if op.startswith('buffer_store') and ('x4' in op or 'x3' in op): self.widestore = R(0)
        elif op.startswith('s_'):
            self.kind = 'salu'
            if op.startswith('s_cmp') or op.startswith('s_cbranch') or op in ('s_branch','s_waitcnt','s_barrier','s_endpgm','s_sleep','s_setprio') or op.startswith('s_bitcmp'):
                for i in range(len(ops)): self.rd |= R(i)
            else:
                self.wr = R(0)
                for i in range(1, len(ops)): self.rd |= R(i)
                if 'saveexec' in op: self.wr |= regs('exec')

def need(p, c):
    n = 0
    vw = {r for r in p.wr if r[0] != 's'}
    sw = {r for r in p.wr if r[0] == 's'}
    if p.kind == 'valu':
        if c.kind == 'mfma' and (vw & c.rd): n = max(n, 2)
        if c.kind == 'valu':
            if c.op.startswith('v_permlane') and (vw & c.rd): n = max(n, 2)
            if getattr(c, 'dpp', False) and (vw & c.rd): n = max(n, 2)
            if (c.op.startswith('v_readlane') or c.op.startswith('v_readfirstlane')) and (vw & c.rd): n = max(n, 1)
            if p.op.split('_e')[0] in TRANS and (vw & c.rd) and c.op not in TRANS: n = max(n, 1)
            if sw & c.rd: n = max(n, 4 if c.op.startswith('v_readlane') or c.op.startswith('v_writelane') else 2)
            if c.op.startswith('v_cndmask') and len(c.ops) == 4 and (sw & regs(c.ops[3])): n = max(n, 2)
        if c.kind == 'vmem' and (sw & c.rd): n = max(n, 5)
        if c.kind == 'salu' and (sw & c.rd) and not c.op.startswith('s_cbranch') : n = max(n, 1)
        if p.op.split('_e')[0] in TRANS and c.kind in ('ds','vmem') and (vw & c.rd): n = max(n, 1)
    if p.kind == 'mfma':
        big = p.passes == 8
        if c.kind == 'mfma':
            if p.wr & c.srcAB: n = max(n, 12 if big else 8)
            if p.wr & c.srcC:
                if not (p.wr == c.srcC and p.op == c.op): n = max(n, 10 if big else 6)
            elif p.wr & c.wr: n = max(n, 10 if big else 6)
        elif c.kind in ('valu', 'ds', 'vmem'):
            if p.wr & (c.rd | c.wr): n = max(n, 12 if big else 8)
            if c.kind == 'valu' and (p.srcC & c.wr): n = max(n, 7 if big else 3)
    if p.kind == 'salu' and (('s', 124) in p.wr) and getattr(c, 'ldsdma', False): n = max(n, 1)
    if hasattr(p, 'widestore') and (p.widestore & c.wr): n = max(n, 2 if c.kind == 'valu' else 1)
    return n

def check_hazards(lines, verbose=True):
    ins = []; labels = {}
    for ln in lines:
        t = ln.split(';')[0].strip()
        if not t or t.startswith('.'): continue
        if t.endswith(':'):
            labels[t[:-1]] = len(ins); continue
        ins.append(Ins(t, len(ins)))
    preds = [[] for _ in ins] + [[]]
    for i, x in enumerate(ins):
        if x.op == 's_endpgm': continue
        if x.op == 's_branch':
            preds[labels[x.ops[0]]].append(i); continue
        if x.op.startswith('s_cbranch'):
            preds[labels[x.ops[0]]].append(i)
        preds[i + 1].append(i)
    bad = 0
    for i, c in enumerate(ins):
        if c.kind in ('nop', 'other'): continue
        stack = [(p, 0) for p in preds[i]]
        seen = {}
        while stack:
            j, dist = stack.pop()
            if seen.get(j, 99) <= dist: continue
            seen[j] = dist
            p = ins[j]
            n = need(p, c)
            if n > dist:
                bad += 1
                if verbose: print(f"HAZARD need {n} have {dist}: [{p.txt}] -> [{c.txt}]", file=sys.stderr)
            nd = dist + p.states
            if nd < 12:
                for q in preds[j]: stack.append((q, nd))
    return bad
```

```python
from asmlib import *
KNAME = 'adaLN_cond__memory_aug_recurrent_mem_tr__swiglu_ffn__prompt'
FLG = 0x0000000
MOD = 0x0010000
M2  = 0x0020000
P1  = 0x1E00000
STAMP = 0x00E0000
H1  = 0x0100000
H2  = 0x0400000
X1  = 0x0700000
PA  = 0x0A00000
PF  = 0x0F00000
KM  = 0x1600000
VM  = 0x1A00000
QB  = 0x2000000
KB  = 0x3000000
VB  = 0x4000000
WS_SIZE = 0x10000000
FP  = FLG + 0x0000
FT  = FLG + 0x2000
FA  = FLG + 0x3000
FH2 = FLG + 0x3200
FF  = FLG + 0x3400
D_INIT = 8*4
D_MOD  = 32*4
D_H1   = 33*4
D_ERR  = 16*4
PX, PMEM0, PWQ, PWK, PWV, PWO, PSL, PBX, PG, PU, PD, PC, PWM, POUT, PDBG, PWS = [4+2*i for i in range(16)]
SRD_WS = 36; SRD_DBG = 40
SR0, SR1, SR2, SR3, SR4 = 44, 48, 52, 56, 60
sW, sCU, sXCC, sSUB, sERR = 64, 65, 66, 67, 68
WS = s(SRD_WS, 4); DBG = s(SRD_DBG, 4)
SPIN = 1 << 15

def mk_srd(A, dst, ptr, size):
    A(f"""s_mov_b32 s{dst}, s{ptr}
    s_and_b32 s{dst+1}, s{ptr+1}, 0xffff
    s_mov_b32 s{dst+2}, {size}
    s_mov_b32 s{dst+3}, 0x20000""")

def wait_counter(A, off, target, vt, vz, sc, err, srd=DBG, cmp='ge'):
    l0 = A.newlab('WC'); l1 = A.newlab('WCD')
    A(f"s_mov_b32 s{sc}, {SPIN}")
    A.label(l0)
    A(f"""buffer_load_dword v{vt}, v{vz}, {srd}, 0 offen offset:{off} sc1
    s_waitcnt vmcnt(0)
    v_cmp_gt_u32 vcc, {target}, v{vt}
    s_cbranch_vccz {l1}
    s_sleep 2
    s_sub_u32 s{sc}, s{sc}, 1
    s_cmp_lg_u32 s{sc}, 0
    s_cbranch_scc1 {l0}
    s_mov_b32 s{sERR}, {err}
    s_branch L_ABORT""")
    A.label(l1)

def rnd2(A, lo, hi, a0, a1, t):
    A(f"""v_cvt_pk_bf16_f32 v{t}, v{a0}, v{a1}
    v_lshlrev_b32 v{lo}, 16, v{t}
    v_and_b32 v{hi}, 0xffff0000, v{t}""")
def rnd1(A, d, a0):
    A(f"""v_cvt_pk_bf16_f32 v{d}, v{a0}, v{a0}
    v_lshlrev_b32 v{d}, 16, v{d}""")

def load_frags(A, jobs, nslots, slot_bytes, sLds, sT, sc=''):
    N = len(jobs)
    issued = []
    cnt = [0]
    def issue(i):
        j = jobs[i]
        sl = j.get('slot', i % nslots)
        for (srd, voff, sbase, const, ldsoff) in j['dma']:
            A(f"s_add_u32 m0, s{sLds}, {sl*slot_bytes+ldsoff}")
            A(f"s_add_u32 s{sT}, s{sbase}, {const}")
            A(f"buffer_load_dwordx4 v{voff}, {s(srd,4)}, s{sT} offen {sc} lds")
            cnt[0] += 1
        issued.append(cnt[0])
    for i in range(min(nslots, N)): issue(i)
    for i in range(N):
        j = jobs[i]
        sl = j.get('slot', i % nslots)
        out = cnt[0] - issued[i]
        assert out <= 63
        A(f"s_waitcnt vmcnt({out})")
        for (dst, vaddr, imm) in j['reads']:
            off = sl*slot_bytes + imm
            assert off < 65536
            A(f"ds_read_b64_tr_b16 {dst}, v{vaddr} offset:{off}")
        if j.get('post'):
            A("s_waitcnt lgkmcnt(0)")
            for ln in j['post']: A(ln(sl*slot_bytes) if callable(ln) else ln)
        if i + nslots < N:
            A("s_waitcnt lgkmcnt(0)")
            issue(i + nslots)
    A("s_waitcnt lgkmcnt(0)")

class WRegs:
    def __init__(self, vbase, abase=0):
        self.vbase = vbase; self.abase = abase
    def __call__(self, i, c):
        na = 256 - self.abase
        if i + c <= na: return a(self.abase + i, c)
        assert i >= na, (i, c)
        r = self.vbase + (i - na)
        assert r + c <= 256, (i, c)
        return v(r, c)

DEV = True
P2B = 2
C2B = 11
D1 = [0,3,0]
D2N = 4
XONLY = False
PFSH = 3
H1DELAY = [0,0,0]
B0 = True
TS = True
STAMP2 = 0x00D0000
def stamp(A, idx, vt=None):
    if not DEV: return
    A(f"""s_memrealtime s[98:99]
    s_memtime s[100:101]
    s_lshl_b32 s96, s{sXCC}, 5
    s_add_u32 s96, s96, s{sCU}
    s_lshl_b32 s96, s96, 2
    s_add_u32 s96, s96, s{sW}
    s_lshl_b32 s96, s96, 7
    s_add_u32 s96, s96, {STAMP + idx*4}
    s_waitcnt lgkmcnt(0)
    v_mov_b32 v{vt}, s98
    v_mov_b32 v{vt+1}, 0
    buffer_store_dword v{vt}, v{vt+1}, {WS}, s96 offen
    s_nop 1
    v_mov_b32 v{vt}, s100
    buffer_store_dword v{vt}, v{vt+1}, {WS}, s96 offen offset:64""")

class Cnt:
    def __init__(self, A, name, mx):
        self.A = A; self.name = name; self.mx = mx
        self.q = []
    def op(self, txt, tag=None):
        self.A(txt); self.q.append(tag)
    def need(self, *tags):
        idx = -1
        for i, t in enumerate(self.q):
            if t in tags: idx = i
        if idx < 0: return
        n = len(self.q) - 1 - idx
        n = min(n, self.mx)
        self.A(f"s_waitcnt {self.name}({n})")
        self.q = self.q[len(self.q) - n:] if n else []
    def drain(self):
        if self.q:
            self.A(f"s_waitcnt {self.name}(0)")
        self.q = []
    def reset(self): self.q = []
```

```python
from common import *
import common
from role_p import arrive_init
from role_pro import gen_mod_ln1, ln_core

SCALE = 0x3db504f3
LOG2E = 0x3fb8aa3b

def mkbits(A, lane, tmp):
    def bits(dst, spec, acc=False):
        first = not acc
        for (lo, n, sh) in spec:
            A(f"v_bfe_u32 v{tmp}, v{lane}, {lo}, {n}")
            if first: A(f"v_lshlrev_b32 v{dst}, {sh}, v{tmp}"); first = False
            else: A(f"v_lshl_add_u32 v{dst}, v{tmp}, {sh}, v{dst}")
    return bits

def red64(A, x, t):
    for m in ("quad_perm:[1,0,3,2]", "quad_perm:[2,3,0,1]", "row_half_mirror", "row_mirror"):
        A.nop(2)
        A(f"v_add_f32_dpp v{x}, v{x}, v{x} {m} row_mask:0xf bank_mask:0xf")
    for p in ("16", "32"):
        A(f"v_mov_b32 v{t}, v{x}")
        A.nop(2)
        A(f"v_permlane{p}_swap_b32 v{x}, v{t}")
        A(f"v_add_f32 v{x}, v{x}, v{t}")

def poll_words(A, vdst, vaddr, soff, imm, sneed, mask, sC, err, sknown=None):
    l0 = A.newlab('PW'); l1 = A.newlab('PWD')
    if mask == 'lo32': A("s_mov_b32 exec_hi, 0")
    else: A(f"s_mov_b64 exec, {mask}")
    if sknown:
        A(f"v_cmp_gt_u32 vcc, s{sneed}, v{vdst}\n s_cbranch_vccz {l1}")
    A(f"s_mov_b32 s{sC}, {SPIN}")
    A.label(l0)
    A(f"""buffer_load_dword v{vdst}, v{vaddr}, {WS}, s{soff} offen offset:{imm} sc1
    s_waitcnt vmcnt(0)
    v_cmp_gt_u32 vcc, s{sneed}, v{vdst}
    s_cbranch_vccz {l1}
    s_sub_u32 s{sC}, s{sC}, 1
    s_cmp_lg_u32 s{sC}, 0
    s_cbranch_scc1 {l0}
    s_mov_b32 s{sERR}, {err}
    s_branch L_ABORT""")
    A.label(l1)
    A("s_mov_b64 exec, -1")

def gemm2_store(A, ACC, vSa, vSb, sbase, sT, TMP):
    for tt in range(2):
        for r in range(4):
            t = TMP + 8*((tt*4 + r) & 1)
            for y in range(4):
                A(f"v_cvt_pk_bf16_f32 v{t+y}, v{ACC[tt][2*y]+r}, v{ACC[tt][2*y+1]+r}")
            A(f"v_cvt_pk_bf16_f32 v{t+4}, v{ACC[tt][8]+r}, v{ACC[tt][8]+r}")
            A(f"s_add_u32 s{sT}, s{sbase}, {(16*tt + r)*36864}")
            A(f"buffer_store_dwordx4 {v(t,4)}, v{vSa}, {WS}, s{sT} offen")
            A(f"buffer_store_short v{t+4}, v{vSb}, {WS}, s{sT} offen")

def reduce_row(A, PL, SEL, RD, vRa, vRb, sbase, sT, vWa, vWb, L_R, L_E):
    for i in range(8):
        A(f"s_add_u32 s{sT}, s{sbase}, {i*4*1152}")
        A(f"buffer_load_dwordx4 {v(PL+4*i,4)}, v{vRa}, {WS}, s{sT} offen sc1")
    A(f"buffer_load_dwordx4 {v(PL+32,4)}, v{vRb}, {WS}, s{sbase} offen sc1")
    for i in range(8):
        A(f"s_waitcnt vmcnt({8-i})")
        A(f"v_mfma_f32_16x16x32_bf16 {v(RD,4)}, {v(SEL,4)}, {v(PL+4*i,4)}, {'0' if i == 0 else v(RD,4)}")
    A("s_waitcnt vmcnt(0)")
    A(f"v_mfma_f32_16x16x32_bf16 {v(RD+4,4)}, {v(SEL,4)}, {v(PL+32,4)}, 0")
    A.nop(6)
    A(f"ds_write2_b32 v{vWa}, v{RD}, v{RD+1} offset0:0 offset1:16")
    A.nop(1)
    A(f"ds_write_b64 v{vWb}, {v(RD+4,2)}")
    A("s_waitcnt lgkmcnt(0)\n s_barrier")

def reduce_setup(A, bits, lane, t0, t1, SEL, vSa, vSb, vRa, vRb, vWa, vWb, vLa, vLb, vGa, vGb, L_R, L_E, sT):
    A(f"""v_and_b32 v{t0}, 1, v{lane}
    v_lshlrev_b32 v{t0}, 4, v{t0}
    v_mov_b32 v{t1}, 0x3f80
    v_lshlrev_b32 v{t1}, v{t0}, v{t1}
    v_bfe_u32 v{t0}, v{lane}, 2, 2""")
    for q in range(4):
        A(f"""v_cmp_eq_u32 vcc, {q}, v{t0}
        s_nop 1
        v_cndmask_b32 v{SEL+q}, 0, v{t1}, vcc""")
    bits(t1, [(4, 2, 0)])
    A(f"s_mov_b32 s{sT}, {4*36864}\n v_mul_lo_u32 v{vSa}, s{sT}, v{t1}\n v_mov_b32 v{vSb}, v{vSa}")
    bits(vSa, [(0, 4, 4)], acc=True); bits(vSb, [(0, 4, 1)], acc=True)
    A(f"""s_lshl_b32 s{sT}, s{sW}, 8
    v_add_u32 v{vSa}, s{sT}, v{vSa}
    s_lshl_b32 s{sT}, s{sW}, 5
    s_add_u32 s{sT}, s{sT}, 1024
    v_add_u32 v{vSb}, s{sT}, v{vSb}""")
    bits(t1, [(4, 2, 0)])
    A(f"v_mul_u32_u24 v{vRa}, 1152, v{t1}")
    bits(vRa, [(0, 4, 4)], acc=True)
    A(f"s_lshl_b32 s{sT}, s{sW}, 8\n v_add_u32 v{vRa}, s{sT}, v{vRa}")
    bits(t1, [(3, 3, 0)])
    A(f"v_mul_u32_u24 v{vRb}, 1152, v{t1}")
    bits(vRb, [(0, 3, 4)], acc=True)
    A(f"s_mul_i32 s{sT}, s{sW}, {8*1152}\n s_add_u32 s{sT}, s{sT}, 1024\n v_add_u32 v{vRb}, s{sT}, v{vRb}")
    bits(vWa, [(4, 2, 7), (0, 4, 2)])
    A(f"s_lshl_b32 s{sT}, s{sW}, 9\n s_add_u32 s{sT}, s{sT}, {L_R}\n v_add_u32 v{vWa}, s{sT}, v{vWa}")
    bits(vWb, [(3, 1, 8), (0, 3, 5), (4, 2, 3)])
    A(f"s_lshl_b32 s{sT}, s{sW}, 9\n s_add_u32 s{sT}, s{sT}, {L_E}\n v_add_u32 v{vWb}, s{sT}, v{vWb}")
    A(f"v_lshlrev_b32 v{vLa}, 5, v{lane}\n v_lshlrev_b32 v{vLb}, 2, v{lane}")
    bits(t1, [(4, 2, 0)])
    A(f"v_mul_u32_u24 v{vGa}, 288, v{t1}\n v_add_u32 v{vGb}, 256, v{vGa}")
    bits(vGa, [(0, 4, 4)], acc=True); bits(vGb, [(0, 4, 1)], acc=True)

def load9(A, dst, tmp, vGa, vGb, srd, soff, imm, sc='sc1'):
    A(f"buffer_load_dwordx4 {v(tmp,4)}, v{vGa}, {srd}, {soff} offen offset:{imm} {sc}")
    A(f"buffer_load_ushort v{tmp+4}, v{vGb}, {srd}, {soff} offen offset:{imm} {sc}")
def unpack9(A, dst, tmp):
    for d in range(4):
        A(f"v_lshlrev_b32 v{dst+2*d}, 16, v{tmp+d}\n v_and_b32 v{dst+2*d+1}, 0xffff0000, v{tmp+d}")
    A(f"v_lshlrev_b32 v{dst+8}, 16, v{tmp+4}")
def rnd9(A, r, t):
    for d in range(4): rnd2(A, r+2*d, r+2*d+1, r+2*d, r+2*d+1, t)
    rnd1(A, r+8, r+8)
def store9(A, r, tmp, vGa, vGb, srd, soff, sc='sc1'):
    for d in range(4): A(f"v_cvt_pk_bf16_f32 v{tmp+d}, v{r+2*d}, v{r+2*d+1}")
    A(f"v_cvt_pk_bf16_f32 v{tmp+4}, v{r+8}, v{r+8}")
    A(f"buffer_store_dwordx4 {v(tmp,4)}, v{vGa}, {srd}, {soff} offen {sc}")
    A(f"buffer_store_short v{tmp+4}, v{vGb}, {srd}, {soff} offen {sc}")
def read_sums(A, Y, E, vLa, vLb, L_R, L_E):
    A(f"ds_read_b128 {v(Y,4)}, v{vLa} offset:{L_R}\n ds_read_b128 {v(Y+4,4)}, v{vLa} offset:{L_R+16}")
    for i in range(8): A(f"ds_read_b32 v{E+i}, v{vLb} offset:{L_E+256*i}")
    A("s_waitcnt lgkmcnt(0)")
    for st in (4, 2):
        for i in range(st): A(f"v_add_f32 v{E+i}, v{E+i}, v{E+i+st}")
    A(f"v_add_f32 v{Y+8}, v{E}, v{E+1}")

def gen_A(A):
    A.label('L_ROLE_A')
    sT, sC, sN, sLds, sWo, sQKV, sEX, sFP, sFTo, sPA, sPR, sFA, sFH, sRow, sNeed, sT2 = range(74, 90)
    lane, t0, t1, vZ = 0, 1, 2, 3
    A(f"""v_mov_b32 v{vZ}, 0
    s_lshl_b32 s{sT}, s{sSUB}, 7
    s_lshl_b32 s{sT2}, s{sCU}, 2
    s_add_u32 s{sFA}, s{sT}, {FA}
    s_add_u32 s{sT}, s{sT}, s{sT2}
    s_add_u32 s{sFH}, s{sT}, {FH2}
    s_add_u32 s{sT}, s{sT}, {FA}
    buffer_store_dword v{vZ}, v{vZ}, {WS}, s{sT} offen
    buffer_store_dword v{vZ}, v{vZ}, {WS}, s{sFH} offen sc1
    s_waitcnt vmcnt(0)
    s_barrier""")
    arrive_init(A, t0, vZ)
    gen_mod_ln1(A)
    stamp(A, 1, 2)
    A("s_barrier")
    bits = mkbits(A, lane, t0)
    mk_srd(A, SR3, PWO, 4096*1152)
    vDm, vD8, vTr, vL16, vFP, vFT, vFA, vL4, vKW, vVW, vVR, vKR, vOW, vOR = range(4, 18)
    vSa, vSb, vRa, vRb, vWa, vWb, vLa, vLb, vGa, vGb = range(18, 28)
    SEL = 28; GA = 32; CB = 42; SBv = 52
    vTok = 61
    QF = 64; KF = 96; VF = 128; SX = 136; SMm = 152; OO = 168; KMF = 184; TM = 216
    L_KM = 0; L_VM = 2048; L_OO = 4096; L_R = 12288; L_E = 14336; L_ST = 16384
    A(f"v_mov_b32 v{vZ}, 0")
    bits(t1, [(2, 4, 0)])
    A(f"v_mul_u32_u24 v{vDm}, 1152, v{t1}\n v_mov_b32 v{vD8}, v{vDm}")
    bits(vDm, [(0, 2, 4)], acc=True); bits(vD8, [(0, 1, 4)], acc=True)
    A(f"""v_bfe_u32 v{t0}, v{lane}, 1, 1
    v_mul_u32_u24 v{t0}, {32*1152}, v{t0}
    v_add_u32 v{vD8}, v{vD8}, v{t0}
    s_mul_i32 s{sLds}, s{sW}, 36864
    s_add_u32 s{sLds}, s{sLds}, {L_ST}
    s_mul_i32 s{sWo}, s{sCU}, {128*1152}
    s_mul_i32 s{sT}, s{sW}, 288
    s_add_u32 s{sWo}, s{sWo}, s{sT}""")
    bits(vTr, [(5, 1, 10), (4, 1, 8), (2, 2, 6), (0, 2, 3)])
    A(f"v_add_u32 v{vTr}, s{sLds}, v{vTr}")
    WF = lambda t, kk: (t*4 + kk)*4
    jobs = []
    for kk in range(4):
        for y in range(4):
            jobs.append(dict(dma=[(SR3, vDm, sWo, (32*kk + 16*i)*1152 + y*64, i*1024) for i in range(2)],
                             reads=[(a(WF(2*y+u, kk) + 2*yy, 2), vTr, yy*512 + u*32) for u in range(2) for yy in range(2)]))
    for k2 in range(2):
        jobs.append(dict(dma=[(SR3, vD8, sWo, (64*k2 + 16*i)*1152 + 256, i*1024) for i in range(2)],
                         reads=[(a(WF(8, 2*k2+u) + 2*yy, 2), vTr, yy*512 + u*32) for u in range(2) for yy in range(2)]))
    load_frags(A, jobs, 18, 2048, sLds, sT)
    reduce_setup(A, bits, lane, t0, t1, SEL, vSa, vSb, vRa, vRb, vWa, vWb, vLa, vLb, vGa, vGb, L_R, L_E, sT)
    A(f"s_mov_b32 s{sT}, {MOD+2*1152}")
    load9(A, GA, TM, vGa, vGb, WS, f"s{sT}", 0); load9(A, SBv, TM+8, vGa, vGb, WS, f"s{sT}", 1152); load9(A, CB, TM+16, vGa, vGb, WS, f"s{sT}", 2304)
    A("s_waitcnt vmcnt(0)")
    unpack9(A, GA, TM); unpack9(A, SBv, TM+8); unpack9(A, CB, TM+16)
    for i in range(9): A(f"v_add_f32 v{CB+i}, 1.0, v{CB+i}")
    rnd9(A, CB, TM)
    A(f"""v_lshlrev_b32 v{vL16}, 4, v{lane}
    v_lshlrev_b32 v{vL4}, 2, v{lane}
    v_mov_b32 v{vFP}, 0
    v_mov_b32 v{vFT}, 0""")
    bits(vKW, [(3, 1, 8), (1, 1, 7), (4, 2, 5), (0, 1, 3), (2, 1, 2)])
    A(f"s_lshl_b32 s{sT}, s{sW}, 9\n v_add_u32 v{vKW}, s{sT}, v{vKW}")
    bits(vVW, [(0, 4, 4), (4, 2, 2)])
    A(f"s_add_u32 s{sT}, s{sT}, {L_VM}\n v_add_u32 v{vVW}, s{sT}, v{vVW}")
    bits(vVR, [(0, 5, 4), (5, 1, 3)])
    A(f"v_add_u32 v{vVR}, s{sT}, v{vVR}")
    bits(vKR, [(5, 1, 7), (0, 3, 4)])
    A(f"s_lshl_b32 s{sT}, s{sW}, 11\n s_add_u32 s{sT}, s{sT}, {L_OO}\n v_add_u32 v{vOW}, s{sT}, v{vL16}")
    bits(vOR, [(4, 2, 9), (0, 4, 4)])
    A(f"""v_and_b32 v{vTok}, 31, v{lane}
    v_bfe_u32 v{t0}, v{lane}, 5, 1
    v_lshlrev_b32 v{t0}, 2, v{t0}
    v_sub_u32 v{vTok}, v{vTok}, v{t0}
    s_lshl_b32 s{sQKV}, s{sSUB}, 5
    s_add_u32 s{sQKV}, s{sQKV}, s{sCU}
    s_lshl_b32 s{sFP}, s{sQKV}, 7
    s_lshl_b32 s{sEX}, s{sQKV}, 12
    s_mul_i32 s{sRow}, s{sQKV}, 1152
    s_lshl_b32 s{sQKV}, s{sQKV}, 13
    s_lshl_b32 s{sT}, s{sW}, 10
    s_add_u32 s{sEX}, s{sEX}, s{sT}
    s_add_u32 s{sEX}, s{sEX}, {KM}
    s_lshl_b32 s{sFTo}, s{sCU}, 7
    s_add_u32 s{sFTo}, s{sFTo}, {FT}
    s_mul_i32 s{sT}, s{sSUB}, 0x240000
    s_add_u32 s{sT}, s{sT}, {PA}
    s_mul_i32 s{sPA}, s{sCU}, 1152
    s_add_u32 s{sPA}, s{sPA}, s{sT}
    s_mul_i32 s{sPR}, s{sCU}, 36864
    s_add_u32 s{sPR}, s{sPR}, s{sT}
    s_mov_b32 s{sN}, 0""")
    wait_counter(A, D_INIT, 256, t0, vZ, sC, 0x31)
    A("s_barrier")
    stamp(A, 2, TM)
    A.label('L_A_LOOP')
    A(f"s_add_u32 s{sNeed}, s{sN}, 1")
    poll_words(A, vFP, vL16, sFP, FP, sNeed, "15", sC, 0x32, True)
    for ks in range(8):
        hi = ks >> 2
        if ks % 4 == 0:
            A(f"s_add_u32 s{sT}, s{sQKV}, {KB + hi*4096}\n s_add_u32 s{sT2}, s{sQKV}, {QB + hi*4096}")
        A(f"buffer_load_dwordx4 {v(KF+4*ks,4)}, v{vL16}, {WS}, s{sT} offen offset:{(ks&3)*1024} sc1")
        A(f"buffer_load_dwordx4 {v(QF+4*ks,4)}, v{vL16}, {WS}, s{sT2} offen offset:{(ks&3)*1024} sc1")
    A(f"s_lshl_b32 s{sT}, s{sW}, 11\n s_add_u32 s{sT}, s{sT}, s{sQKV}\n s_add_u32 s{sT}, s{sT}, {VB}")
    for j in range(2): A(f"buffer_load_dwordx4 {v(VF+4*j,4)}, v{vL16}, {WS}, s{sT} offen offset:{j*1024} sc1")
    for ks in range(8):
        A(f"s_waitcnt vmcnt({16-2*ks})")
        A(f"v_mfma_f32_32x32x16_bf16 {v(SX,16)}, {v(KF+4*ks,4)}, {v(QF+4*ks,4)}, {'0' if ks == 0 else v(SX,16)}")
    A(f"s_mov_b32 s{sT}, {SCALE}\n v_mov_b32 v{TM+2}, 0xce6e6b28")
    A.nop(10)
    def rscale(r, n):
        for i in range(0, n, 2):
            rnd2(A, r+i, r+i+1, r+i, r+i+1, TM)
            A(f"v_mul_f32 v{r+i}, s{sT}, v{r+i}\n v_mul_f32 v{r+i+1}, s{sT}, v{r+i+1}")
            rnd2(A, r+i, r+i+1, r+i, r+i+1, TM)
    rscale(SX, 16)
    for r in range(16):
        key = (r & 3) + 8*(r >> 2)
        A(f"v_cmp_le_i32 vcc, {key}, v{vTok}\n s_nop 1\n v_cndmask_b32 v{SX+r}, v{TM+2}, v{SX+r}, vcc")
    MXv = TM+4
    A(f"v_max3_f32 v{MXv}, v{SX}, v{SX+1}, v{SX+2}")
    for r in range(3, 15, 2): A(f"v_max3_f32 v{MXv}, v{MXv}, v{SX+r}, v{SX+r+1}")
    A(f"v_max_f32 v{MXv}, v{MXv}, v{SX+15}")
    XR = TM+8
    load9(A, XR, XR, vGa, vGb, s(SR0,4), f"s{sRow}", 0, sc='')
    A(f"s_lshl_b32 s{sNeed}, s{sN}, 1\n s_add_u32 s{sNeed}, s{sNeed}, s{sSUB}\n s_add_u32 s{sNeed}, s{sNeed}, 1")
    poll_words(A, vFT, vL4, sFTo, 0, sNeed, "15", sC, 0x33, True)
    A(f"""buffer_load_dwordx4 {v(TM+16,4)}, v{vL16}, {WS}, s{sEX} offen sc1
    s_waitcnt vmcnt(0)
    ds_write2_b32 v{vKW}, v{TM+16}, v{TM+17} offset0:0 offset1:4
    ds_write2_b32 v{vVW}, v{TM+18}, v{TM+19} offset0:0 offset1:64
    s_waitcnt lgkmcnt(0)
    s_barrier""")
    for ks in range(8): A(f"ds_read_b128 {v(KMF+4*ks,4)}, v{vKR} offset:{L_KM+ks*256}")
    VMf = TM+16
    A(f"ds_read_b64 {v(VMf,2)}, v{vVR}")
    for ks in range(8):
        A(f"s_waitcnt lgkmcnt({8-ks})")
        A(f"v_mfma_f32_32x32x16_bf16 {v(SMm,16)}, {v(KMF+4*ks,4)}, {v(QF+4*ks,4)}, {'0' if ks == 0 else v(SMm,16)}")
    A(f"s_mov_b32 s{sT}, {SCALE}")
    A.nop(11)
    rscale(SMm, 4)
    A(f"""v_max3_f32 v{MXv}, v{MXv}, v{SMm}, v{SMm+1}
    v_max3_f32 v{MXv}, v{MXv}, v{SMm+2}, v{SMm+3}
    v_mov_b32 v{MXv+1}, v{MXv}
    s_mov_b32 s{sT}, {LOG2E}
    s_nop 0
    v_permlane32_swap_b32 v{MXv}, v{MXv+1}
    v_max_f32 v{MXv}, v{MXv}, v{MXv+1}""")
    vals = [SX+i for i in range(16)] + [SMm+i for i in range(4)]
    for r in vals: A(f"v_sub_f32 v{r}, v{r}, v{MXv}\n v_mul_f32 v{r}, s{sT}, v{r}")
    for r in vals: A(f"v_exp_f32 v{r}, v{r}")
    PP = KMF
    for i in range(10): A(f"v_cvt_pk_bf16_f32 v{PP+i}, v{vals[2*i]}, v{vals[2*i+1]}")
    A("s_waitcnt lgkmcnt(0)")
    Zr = TM+6
    A(f"v_add_f32 v{Zr}, v{vals[0]}, v{vals[1]}")
    A(f"v_mfma_f32_32x32x16_bf16 {v(OO,16)}, {v(VF,4)}, {v(PP,4)}, 0")
    for r in vals[2:8]: A(f"v_add_f32 v{Zr}, v{Zr}, v{r}")
    A(f"v_mfma_f32_32x32x16_bf16 {v(OO,16)}, {v(VF+4,4)}, {v(PP+4,4)}, {v(OO,16)}")
    for r in vals[8:14]: A(f"v_add_f32 v{Zr}, v{Zr}, v{r}")
    A(f"v_mfma_f32_32x32x8_bf16 {v(OO,16)}, {v(VMf,2)}, {v(PP+8,2)}, {v(OO,16)}")
    for r in vals[14:]: A(f"v_add_f32 v{Zr}, v{Zr}, v{r}")
    A(f"""v_mov_b32 v{Zr+1}, v{Zr}
    s_nop 1
    v_permlane32_swap_b32 v{Zr}, v{Zr+1}
    v_add_f32 v{Zr}, v{Zr}, v{Zr+1}
    v_rcp_f32 v{Zr}, v{Zr}
    s_nop 0""")
    for r in range(16): A(f"v_mul_f32 v{OO+r}, v{OO+r}, v{Zr}")
    for i in range(8): A(f"v_cvt_pk_bf16_f32 v{SX+i}, v{OO+2*i}, v{OO+2*i+1}")
    A(f"""ds_write_b128 v{vOW}, {v(SX,4)}
    ds_write_b128 v{vOW}, {v(SX+4,4)} offset:1024
    s_waitcnt lgkmcnt(0)
    s_barrier""")
    OF = KMF
    for kk in range(4):
        for tt in range(2): A(f"ds_read_b128 {v(OF+(kk*2+tt)*4,4)}, v{vOR} offset:{L_OO+kk*2048+tt*256}")
    ACC = [[QF + (tt*9 + t)*4 for t in range(9)] for tt in range(2)]
    for kk in range(4):
        for tt in range(2):
            A(f"s_waitcnt lgkmcnt({7-(kk*2+tt)})")
            for t in range(9):
                d = v(ACC[tt][t], 4)
                A(f"v_mfma_f32_16x16x32_bf16 {d}, {v(OF+(kk*2+tt)*4,4)}, {a(WF(t,kk),4)}, {'0' if kk == 0 else d}")
    gemm2_store(A, ACC, vSa, vSb, sPA, sT, SX)
    A(f"""s_waitcnt vmcnt(0)
    s_barrier
    s_add_u32 s{sNeed}, s{sN}, 1
    s_cmp_lg_u32 s{sW}, 0
    s_cbranch_scc1 L_A_NOFL
    s_lshl_b32 s{sT}, s{sCU}, 2
    s_add_u32 s{sT}, s{sT}, s{sFA}
    v_mov_b32 v{t0}, s{sNeed}
    s_mov_b64 exec, 1
    buffer_store_dword v{t0}, v{vZ}, {WS}, s{sT} offen
    s_mov_b64 exec, -1""")
    A.label('L_A_NOFL')
    poll_words(A, vFA, vL4, sFA, 0, sNeed, "lo32", sC, 0x34, False)
    reduce_row(A, QF, SEL, SX, vRa, vRb, sPR, sT, vWa, vWb, L_R, L_E)
    A(f"""s_and_b32 s{sT}, s{sN}, 3
    s_cmp_lg_u32 s{sT}, s{sW}
    s_cbranch_scc1 L_A_NOLN""")
    Y = SX; E_ = SMm; X9 = OO
    unpack9(A, X9, XR)
    read_sums(A, Y, E_, vLa, vLb, L_R, L_E)
    rnd9(A, Y, TM)
    for i in range(9): A(f"v_mul_f32 v{Y+i}, v{GA+i}, v{Y+i}")
    rnd9(A, Y, TM)
    for i in range(9): A(f"v_add_f32 v{Y+i}, v{X9+i}, v{Y+i}")
    rnd9(A, Y, TM)
    A(f"s_add_u32 s{sT}, s{sRow}, {X1}")
    store9(A, Y, TM+24, vGa, vGb, WS, f"s{sT}")
    ln_core(A, Y, 9, TM, red64)
    for i in range(9): A(f"v_mul_f32 v{Y+i}, v{CB+i}, v{Y+i}")
    rnd9(A, Y, TM)
    for i in range(9): A(f"v_add_f32 v{Y+i}, v{SBv+i}, v{Y+i}")
    A(f"s_add_u32 s{sT}, s{sRow}, {H2}")
    store9(A, Y, TM+32, vGa, vGb, WS, f"s{sT}")
    A(f"""s_waitcnt vmcnt(0)
    v_mov_b32 v{t0}, s{sNeed}
    s_mov_b64 exec, 1
    buffer_store_dword v{t0}, v{vZ}, {WS}, s{sFH} offen sc1
    s_mov_b64 exec, -1""")
    A.label('L_A_NOLN')
    A(f"""s_bitcmp1_b32 s{sN}, 0
    s_mov_b32 s{sT}, 0x120000
    s_cselect_b32 s{sT}, {(-0x120000) & 0xffffffff}, s{sT}
    s_add_u32 s{sPA}, s{sPA}, s{sT}
    s_add_u32 s{sPR}, s{sPR}, s{sT}
    s_add_u32 s{sQKV}, s{sQKV}, {64*8192}
    s_add_u32 s{sEX}, s{sEX}, {64*4096}
    s_add_u32 s{sRow}, s{sRow}, {64*1152}
    s_add_u32 s{sN}, s{sN}, 1
    s_cmp_lt_u32 s{sN}, 32
    s_cbranch_scc1 L_A_LOOP""")
    stamp(A, 3, TM)
    A("s_endpgm")
```

```python
from common import *
import common
from role_p import arrive_init
from role_a import *

def gen_F(A):
    A.label('L_ROLE_F')
    sT, sC, sS, sLds, sGU, sWd, sMx, sPF, sPR, sFF, sRow, sNeed, sT2, sN, sH = range(70, 85)
    lane, t0, t1, vZ = 0, 1, 2, 3
    W = WRegs(134)
    L_H = 0; L_ACT = 36864; L_A16 = L_ACT + 8192; L_R = L_ACT; L_E = L_ACT + 2048; L_WD = 46080; L_MIX = 119808
    mk_srd(A, SR0, PG, 576*9216); mk_srd(A, SR1, PU, 576*9216); mk_srd(A, SR2, PD, 4608*1152); mk_srd(A, SR3, POUT, 2048*1152)
    A(f"""v_mov_b32 v{vZ}, 0
    s_lshl_b32 s{sFF}, s{sSUB}, 7
    s_add_u32 s{sFF}, s{sFF}, {FF}
    s_lshl_b32 s{sT2}, s{sCU}, 2
    s_add_u32 s{sT}, s{sFF}, s{sT2}
    buffer_store_dword v{vZ}, v{vZ}, {WS}, s{sT} offen
    s_waitcnt vmcnt(0)
    s_barrier""")
    arrive_init(A, t0, vZ)
    bits = mkbits(A, lane, t0)
    vL16, vL4, vFH, vFF, vWL, vMR, vAW0, vAW1, vA16W, vOR, vA16R = range(4, 15)
    vB = [15, 16, 17, 18]
    vSa, vSb, vRa, vRb, vWa, vWb, vLa, vLb, vGa, vGb = range(19, 29)
    vDH = 29
    GB = 38
    XR = 47
    XR = 48
    SEL = 56
    WK = 60
    vDg, vDd, vD8, vDx, vTg, vTd, vT16, vTm, vMW = range(WK+20, WK+29)
    bits(t1, [(2, 4, 0)])
    A(f"v_mul_u32_u24 v{vDg}, 9216, v{t1}\n v_mul_u32_u24 v{vDd}, 1152, v{t1}\n v_mov_b32 v{vD8}, v{vDd}")
    bits(vDg, [(0, 2, 4)], acc=True); bits(vDd, [(0, 2, 4)], acc=True); bits(vD8, [(0, 1, 4)], acc=True)
    A(f"""v_bfe_u32 v{t0}, v{lane}, 1, 1
    v_mul_u32_u24 v{t0}, {32*1152}, v{t0}
    v_add_u32 v{vD8}, v{vD8}, v{t0}""")
    bits(t1, [(1, 5, 0)])
    A(f"v_mul_u32_u24 v{vDx}, 9216, v{t1}")
    bits(vDx, [(0, 1, 4)], acc=True)
    A(f"""s_mul_i32 s{sGU}, s{sCU}, 288
    s_mul_i32 s{sT}, s{sW}, {32*9216}
    s_add_u32 s{sMx}, s{sGU}, s{sT}
    s_add_u32 s{sMx}, s{sMx}, 256
    s_lshl_b32 s{sT}, s{sW}, 6
    s_add_u32 s{sGU}, s{sGU}, s{sT}
    s_mul_i32 s{sWd}, s{sCU}, {144*1152}
    s_mul_i32 s{sT}, s{sW}, 288
    s_add_u32 s{sWd}, s{sWd}, s{sT}
    s_lshl_b32 s{sLds}, s{sW}, 11
    s_add_u32 s{sLds}, s{sLds}, {L_MIX}
    v_lshlrev_b32 v{vL16}, 4, v{lane}
    v_lshlrev_b32 v{vL4}, 2, v{lane}
    v_add_u32 v{vMW}, s{sLds}, v{vL16}""")
    bits(vTm, [(0, 1, 10), (4, 2, 8), (2, 2, 5), (1, 1, 3)])
    A(f"v_add_u32 v{vTm}, s{sLds}, v{vTm}")
    jobs = []
    for i in range(5):
        post = [(lambda sb, q=q: f"ds_write_b128 v{vMW}, {v(WK+4*q,4)} offset:{sb+q*1024}") for q in range(2)] + ["s_waitcnt lgkmcnt(0)"]
        jobs.append(dict(dma=[(SR0, vDx, sMx, i*128*9216, 0), (SR1, vDx, sMx, i*128*9216, 1024)],
                         reads=[(v(WK+4*mt+2*yy, 2), vTm, yy*128 + mt*16) for mt in range(2) for yy in range(2)], post=post))
    load_frags(A, jobs, 5, 8192, sLds, sT)
    A(f"""s_mul_i32 s{sLds}, s{sW}, 18432
    s_add_u32 s{sLds}, s{sLds}, {L_WD}
    v_add_u32 v{vWL}, s{sLds}, v{vL16}""")
    bits(vTg, [(4, 2, 9), (2, 2, 6), (0, 2, 3)])
    bits(vTd, [(4, 2, 8), (2, 2, 6), (0, 2, 3)])
    bits(vT16, [(4, 1, 6), (5, 1, 8), (2, 1, 7), (3, 1, 9), (0, 2, 3)])
    for r in (vTg, vTd, vT16): A(f"v_add_u32 v{r}, s{sLds}, v{r}")
    GU = lambda m, gi, ks: ((m*2 + gi)*18 + ks)*4
    DN = lambda t, kk: 288 + (kk*9 + t)*4
    D16 = lambda t: 360 + 2*t
    jobs = []
    for ks in range(18):
        for m, srd in enumerate((SR0, SR1)):
            jobs.append(dict(dma=[(srd, vDg, sGU, (32*ks + 16*i)*9216, i*1024) for i in range(2)],
                             reads=[(W(GU(m, gi, ks) + 2*yy, 2), vTg, yy*256 + gi*32) for gi in range(2) for yy in range(2)]))
    for kk in range(2):
        for y in range(4):
            jobs.append(dict(dma=[(SR2, vDd, sWd, (32*kk + 16*i)*1152 + y*64, i*1024) for i in range(2)],
                             reads=[(W(DN(2*y+u, kk) + 2*yy, 2), vTd, yy*1024 + u*32) for u in range(2) for yy in range(2)]))
    jobs.append(dict(dma=[(SR2, vD8, sWd, (16*i)*1152 + 256, i*1024) for i in range(2)],
                     reads=[(W(DN(8, u) + 2*yy, 2), vTd, yy*1024 + u*32) for u in range(2) for yy in range(2)]))
    for y in range(5):
        jobs.append(dict(dma=[(SR2, vDd, sWd, 128*1152 + y*64, 0)],
                         reads=[(W(D16(2*y+u), 2), vT16, u*32) for u in range(2) if 2*y+u < 9]))
    while len(jobs) % 9: jobs.append(dict(dma=[], reads=[]))
    ldsW = {}
    post = [(lambda sb, q=q: f"ds_write_b128 v{vWL}, {v(WK+4*q,4)} offset:{sb+q*1024}") for q in range(2)] + ["s_waitcnt lgkmcnt(0)"]
    n = 0
    for kk in (2, 3):
        for y in range(4):
            for u in range(2): ldsW[(2*y+u, kk)] = n*2048 + u*1024
            jobs.append(dict(dma=[(SR2, vDd, sWd, (32*kk + 16*i)*1152 + y*64, i*1024) for i in range(2)],
                             reads=[(v(WK+4*u+2*yy, 2), vTd, yy*1024 + u*32) for u in range(2) for yy in range(2)], post=post))
            n += 1
    for u in range(2): ldsW[(8, 2+u)] = n*2048 + u*1024
    jobs.append(dict(dma=[(SR2, vD8, sWd, (64 + 16*i)*1152 + 256, i*1024) for i in range(2)],
                     reads=[(v(WK+4*u+2*yy, 2), vTd, yy*1024 + u*32) for u in range(2) for yy in range(2)], post=post))
    load_frags(A, jobs, 9, 2048, sLds, sT)
    stamp(A, 1, WK)
    reduce_setup(A, bits, lane, t0, t1, SEL, vSa, vSb, vRa, vRb, vWa, vWb, vLa, vLb, vGa, vGb, L_R, L_E, sT)
    wait_counter(A, D_INIT, 256, t0, vZ, sC, 0x41)
    wait_counter(A, D_MOD, 54, t0, vZ, sC, 0x42)
    A(f"s_mov_b32 s{sT}, {MOD+5*1152}")
    load9(A, GB, WK, vGa, vGb, WS, f"s{sT}", 0)
    A("s_waitcnt vmcnt(0)")
    unpack9(A, GB, WK)
    for i in range(9):
        A(f"""v_add_u32 v{t0}, {i*64}, v{lane}
        v_mul_u32_u24 v{t1}, 911, v{t0}
        v_lshrrev_b32 v{t1}, 17, v{t1}
        s_lshl_b32 s{sT}, s{sW}, 2
        v_add_u32 v{t1}, s{sT}, v{t1}
        v_and_b32 v{t1}, 7, v{t1}
        v_xor_b32 v{t0}, v{t0}, v{t1}
        v_lshlrev_b32 v{vDH+i}, 4, v{t0}""")
    bits(t1, [(0, 4, 0)])
    A(f"v_mul_u32_u24 v{vB[0]}, 1152, v{t1}")
    A(f"""v_bfe_u32 v{t0}, v{lane}, 1, 3
    v_bfe_u32 v{t1}, v{lane}, 4, 2
    v_xor_b32 v{t0}, v{t0}, v{t1}
    v_xor_b32 v{t1}, 4, v{t0}
    v_lshl_add_u32 v{vB[1]}, v{t1}, 4, v{vB[0]}
    v_lshl_add_u32 v{vB[0]}, v{t0}, 4, v{vB[0]}
    s_lshr_b32 s{sT}, s{sW}, 1
    s_xor_b32 s{sT2}, s{sT}, 1
    s_mul_i32 s{sC}, s{sT2}, 18432
    v_add_u32 v{vB[2]}, s{sC}, v{vB[0]}
    v_add_u32 v{vB[3]}, s{sC}, v{vB[1]}
    s_mul_i32 s{sC}, s{sT}, 18432
    v_add_u32 v{vB[0]}, s{sC}, v{vB[0]}
    v_add_u32 v{vB[1]}, s{sC}, v{vB[1]}""")
    bits(vOR, [(4, 2, 9), (0, 4, 4)])
    A(f"""s_lshl_b32 s{sC}, s{sW}, 11
    s_add_u32 s{sC}, s{sC}, {L_ACT}
    v_add_u32 v{vAW0}, s{sC}, v{vOR}
    s_lshl_b32 s{sC}, s{sT2}, 8
    v_add_u32 v{vAW1}, s{sC}, v{vAW0}
    s_lshl_b32 s{sC}, s{sT}, 8
    v_add_u32 v{vAW0}, s{sC}, v{vAW0}""")
    bits(vA16R, [(4, 2, 8), (0, 4, 3)])
    A(f"""s_lshl_b32 s{sC}, s{sT}, 7
    s_and_b32 s{sT2}, s{sW}, 1
    s_lshl_b32 s{sT}, s{sT2}, 2
    s_add_u32 s{sC}, s{sC}, s{sT}
    s_add_u32 s{sC}, s{sC}, {L_A16}
    v_add_u32 v{vA16W}, s{sC}, v{vA16R}
    s_lshl_b32 s{sC}, s{sT2}, 10
    s_add_u32 s{sC}, s{sC}, {L_MIX}
    v_add_u32 v{vMR}, s{sC}, v{vL16}
    s_mul_i32 s{sT}, s{sSUB}, 0x240000
    s_add_u32 s{sT}, s{sT}, {PF}
    s_mul_i32 s{sPF}, s{sCU}, 1152
    s_add_u32 s{sPF}, s{sPF}, s{sT}
    s_mul_i32 s{sPR}, s{sCU}, 36864
    s_add_u32 s{sPR}, s{sPR}, s{sT}
    s_mov_b32 s{sS}, s{sSUB}
    s_mul_i32 s{sLds}, s{sW}, 9216
    s_mov_b32 s{sN}, 0
    s_barrier""")
    stamp(A, 2, WK)
    A.label('L_F_LOOP')
    A(f"""s_lshr_b32 s{sNeed}, s{sS}, 1
    s_add_u32 s{sNeed}, s{sNeed}, 1
    s_and_b32 s{sT2}, s{sS}, 1
    s_lshl_b32 s{sT2}, s{sT2}, 7
    s_add_u32 s{sT2}, s{sT2}, {FH2}
    s_mul_i32 s{sH}, s{sS}, 36864
    s_mul_i32 s{sRow}, s{sCU}, 1152
    s_add_u32 s{sRow}, s{sRow}, s{sH}
    s_add_u32 s{sH}, s{sH}, s{sLds}
    s_add_u32 s{sH}, s{sH}, {H2}""")
    poll_words(A, vFH, vL4, sT2, 0, sNeed, "lo32", sC, 0x43, False)
    for i in range(9):
        A(f"s_add_u32 m0, s{sLds}, {i*1024}\n s_nop 0")
        A(f"buffer_load_dwordx4 v{vDH+i}, {WS}, s{sH} offen sc1 lds")
    A(f"s_add_u32 s{sT}, s{sRow}, {X1}")
    load9(A, XR, XR, vGa, vGb, WS, f"s{sT}", 0)
    A("s_waitcnt vmcnt(2)\n s_barrier")
    ACCG = lambda m, gi, sl: WK + ((m*2 + gi)*2 + sl)*4
    ACCM = WK + 32
    BF = WK + 36
    D = Cnt(A, 'lgkmcnt', 15)
    def rd(ks):
        b = BF + (ks % 3)*12
        for sl in range(2): D.op(f"ds_read_b128 {v(b+4*sl,4)}, v{vB[sl*2+(ks&1)]} offset:{L_H+(ks>>1)*128}", ks)
        D.op(f"ds_read_b128 {v(b+8,4)}, v{vMR} offset:{ks*2048}", ks)
    rd(0); rd(1)
    for ks in range(18):
        if ks + 2 < 18: rd(ks + 2)
        D.need(ks)
        b = BF + (ks % 3)*12
        for m in range(2):
            for gi in range(2):
                for sl in range(2):
                    d = v(ACCG(m, gi, sl), 4)
                    A(f"v_mfma_f32_16x16x32_bf16 {d}, {W(GU(m,gi,ks),4)}, {v(b+4*sl,4)}, {'0' if ks == 0 else d}")
        d = v(ACCM, 4)
        A(f"v_mfma_f32_16x16x32_bf16 {d}, {v(b+8,4)}, {v(b,4)}, {'0' if ks == 0 else d}")
    T = BF
    def actpair(g, u, dst):
        rnd2(A, g, g+1, g, g+1, T); rnd2(A, u, u+1, u, u+1, T)
        A(f"""v_mul_f32 v{T}, 0xbfb8aa3b, v{g}
        v_mul_f32 v{T+1}, 0xbfb8aa3b, v{g+1}
        v_exp_f32 v{T}, v{T}
        v_exp_f32 v{T+1}, v{T+1}
        v_add_f32 v{T}, 1.0, v{T}
        v_add_f32 v{T+1}, 1.0, v{T+1}
        v_rcp_f32 v{T}, v{T}
        v_rcp_f32 v{T+1}, v{T+1}
        v_mul_f32 v{g}, v{g}, v{T}
        v_mul_f32 v{g+1}, v{g+1}, v{T+1}""")
        rnd2(A, g, g+1, g, g+1, T)
        A(f"""v_mul_f32 v{g}, v{g}, v{u}
        v_mul_f32 v{g+1}, v{g+1}, v{u+1}
        v_cvt_pk_bf16_f32 v{dst}, v{g}, v{g+1}""")
    A.nop(4)
    for sl in range(2):
        o = BF + 4 + 4*sl
        for gi in range(2):
            for hh in range(2): actpair(ACCG(0, gi, sl) + 2*hh, ACCG(1, gi, sl) + 2*hh, o + 2*gi + hh)
        A(f"ds_write_b128 v{vAW0 if sl == 0 else vAW1}, {v(o,4)}")
    A(f"""v_permlane16_swap_b32 v{ACCM}, v{ACCM+1}
    v_permlane16_swap_b32 v{ACCM+2}, v{ACCM+3}
    v_mov_b32 v{T+12}, v{ACCM+1}
    v_mov_b32 v{ACCM+1}, v{ACCM+2}
    v_mov_b32 v{ACCM+2}, v{T+12}""")
    actpair(ACCM, ACCM+2, T+12)
    A(f"""ds_write_b32 v{vA16W}, v{T+12}
    s_waitcnt lgkmcnt(0)
    s_barrier""")
    AF = WK + 36
    SG = WK + 56
    ACC = [[WK + 4*t for t in range(9)]]*2
    for tt in range(2):
        D.reset()
        for kk in range(4): D.op(f"ds_read_b128 {v(AF+4*kk,4)}, v{vOR} offset:{L_ACT+kk*2048+tt*256}", ('a', kk))
        D.op(f"ds_read_b64 {v(AF+16,2)}, v{vA16R} offset:{L_A16+tt*128}", ('a', 4))
        seq = [(t, kk) for kk in (2, 3) for t in range(9)]
        for i in range(4): D.op(f"ds_read_b128 {v(SG+4*i,4)}, v{vWL} offset:{ldsW[seq[i]]}", ('w', i))
        regseq = [(t, kk) for kk in (0, 1, 4) for t in range(9)]
        def rm(t, kk):
            d = v(ACC[tt][t], 4)
            D.need(('a', kk))
            if kk == 4: A(f"v_mfma_f32_16x16x16_bf16 {d}, {v(AF+16,2)}, {W(D16(t),2)}, {d}")
            else: A(f"v_mfma_f32_16x16x32_bf16 {d}, {v(AF+4*kk,4)}, {W(DN(t,kk),4)}, {'0' if kk == 0 else d}")
        for x in regseq[:9]: rm(*x)
        for i in range(18):
            t, kk = seq[i]
            d = v(ACC[tt][t], 4)
            D.need(('a', kk), ('w', i))
            A(f"v_mfma_f32_16x16x32_bf16 {d}, {v(AF+4*kk,4)}, {v(SG+4*(i%4),4)}, {d}")
            if i + 4 < 18: D.op(f"ds_read_b128 {v(SG+4*(i%4),4)}, v{vWL} offset:{ldsW[seq[i+4]]}", ('w', i+4))
            rm(*regseq[9 + (i + 4) % 18])
        A.nop(8)
        for r in range(4):
            t = SG + 8*(r & 1)
            for y in range(4): A(f"v_cvt_pk_bf16_f32 v{t+y}, v{ACC[tt][2*y]+r}, v{ACC[tt][2*y+1]+r}")
            A(f"v_cvt_pk_bf16_f32 v{t+4}, v{ACC[tt][8]+r}, v{ACC[tt][8]+r}")
            A(f"s_add_u32 s{sT}, s{sPF}, {(16*tt + r)*36864}")
            A(f"buffer_store_dwordx4 {v(t,4)}, v{vSa}, {WS}, s{sT} offen")
            A(f"buffer_store_short v{t+4}, v{vSb}, {WS}, s{sT} offen")
    A(f"""s_waitcnt vmcnt(0)
    s_barrier
    s_add_u32 s{sNeed}, s{sN}, 1
    s_cmp_lg_u32 s{sW}, 0
    s_cbranch_scc1 L_F_NOFL
    s_lshl_b32 s{sT}, s{sCU}, 2
    s_add_u32 s{sT}, s{sT}, s{sFF}
    v_mov_b32 v{t0}, s{sNeed}
    s_mov_b64 exec, 1
    buffer_store_dword v{t0}, v{vZ}, {WS}, s{sT} offen
    s_mov_b64 exec, -1""")
    A.label('L_F_NOFL')
    poll_words(A, vFF, vL4, sFF, 0, sNeed, "lo32", sC, 0x44, False)
    reduce_row(A, WK, SEL, WK+36, vRa, vRb, sPR, sT, vWa, vWb, L_R, L_E)
    A(f"""s_and_b32 s{sT}, s{sN}, 3
    s_cmp_lg_u32 s{sT}, s{sW}
    s_cbranch_scc1 L_F_NOLN""")
    Y = WK; E_ = WK+12; X9 = WK+24; TM = WK+40
    unpack9(A, X9, XR)
    read_sums(A, Y, E_, vLa, vLb, L_R, L_E)
    rnd9(A, Y, TM)
    for i in range(9): A(f"v_mul_f32 v{Y+i}, v{GB+i}, v{Y+i}")
    rnd9(A, Y, TM)
    for i in range(9): A(f"v_add_f32 v{Y+i}, v{X9+i}, v{Y+i}")
    store9(A, Y, TM+4, vGa, vGb, s(SR3,4), f"s{sRow}", sc='')
    A.label('L_F_NOLN')
    A(f"""s_bitcmp1_b32 s{sN}, 0
    s_mov_b32 s{sT}, 0x120000
    s_cselect_b32 s{sT}, {(-0x120000) & 0xffffffff}, s{sT}
    s_add_u32 s{sPF}, s{sPF}, s{sT}
    s_add_u32 s{sPR}, s{sPR}, s{sT}
    s_add_u32 s{sN}, s{sN}, 1
    s_add_u32 s{sS}, s{sS}, 3
    s_cmp_lt_u32 s{sS}, 64
    s_cbranch_scc1 L_F_LOOP""")
    stamp(A, 3, WK+50)
    A("s_endpgm")
```

```python
from common import *

def rotl3(x): return ((x << 1) & 7) | (x >> 2)
def rotr3(x): return (x >> 1) | ((x & 1) << 2)

def gen_P(A):
    A.label('L_ROLE_P')
    W = WRegs(80)
    mk_srd(A, SR0, PWQ, 576*8192); mk_srd(A, SR1, PWK, 576*8192); mk_srd(A, SR2, PWV, 576*8192)
    sLds, sT, sSrc, sN, sOut, sH, sFl, sC = 70, 71, 72, 73, 74, 75, 76, 77
    vDma, vTrQK, vTrV, vL16, vSt, vZ, vT0, vT1, vT2 = 1, 2, 3, 4, 5, 6, 7, 8, 9
    A(f"""v_mov_b32 v{vZ}, 0
    s_lshl_b32 s{sFl}, s{sSUB}, 5
    s_add_u32 s{sFl}, s{sFl}, s{sCU}
    s_lshl_b32 s{sFl}, s{sFl}, 7
    s_lshl_b32 s{sT}, s{sW}, 4
    s_add_u32 s{sFl}, s{sFl}, s{sT}
    s_add_u32 s{sFl}, s{sFl}, {FP}
    buffer_store_dword v{vZ}, v{vZ}, {WS}, s{sFl} offen sc1
    s_waitcnt vmcnt(0)
    s_barrier""")
    arrive_init(A, vT0, vZ)
    A(f"""v_lshrrev_b32 v{vT0}, 2, v0
    v_lshlrev_b32 v{vDma}, 13, v{vT0}
    v_and_b32 v{vT0}, 3, v0
    v_lshl_add_u32 v{vDma}, v{vT0}, 4, v{vDma}
    s_mul_i32 s{sLds}, s{sW}, 36864
    s_lshl_b32 s{sSrc}, s{sCU}, 8
    s_lshl_b32 s{sT}, s{sW}, 6
    s_add_u32 s{sSrc}, s{sSrc}, s{sT}
    v_lshlrev_b32 v{vL16}, 4, v0""")
    A(f"""v_lshrrev_b32 v{vT0}, 5, v0
    v_lshlrev_b32 v{vT0}, 3, v{vT0}
    v_bfe_u32 v{vT1}, v0, 2, 2
    v_add_u32 v{vT0}, v{vT0}, v{vT1}
    v_lshlrev_b32 v{vT0}, 6, v{vT0}
    v_add_u32 v{vT0}, s{sLds}, v{vT0}
    v_bfe_u32 v{vT1}, v0, 4, 1
    v_lshl_add_u32 v{vT0}, v{vT1}, 5, v{vT0}
    v_and_b32 v{vT1}, 3, v0
    v_lshl_add_u32 v{vTrV}, v{vT1}, 3, v{vT0}
    v_and_b32 v{vT1}, 1, v0
    v_lshl_add_u32 v{vT0}, v{vT1}, 4, v{vT0}
    v_bfe_u32 v{vT1}, v0, 1, 1
    v_lshl_add_u32 v{vTrQK}, v{vT1}, 3, v{vT0}""")
    jobs = []
    for m_, (srd, vtr) in enumerate([(SR1, vTrQK), (SR2, vTrV), (SR0, vTrQK)]):
        for ks in range(36):
            base = (m_*36 + ks)*4
            jobs.append(dict(dma=[(srd, vDma, sSrc, ks*16*8192, 0)],
                             reads=[(W(base, 2), vtr, 0), (W(base+2, 2), vtr, 256)]))
    load_frags(A, jobs, 36, 1024, sLds, sT)
    stamp(A, 1, vT0)
    wait_counter(A, D_INIT, 256, vT0, vZ, sC, 0x11)
    wait_counter(A, D_H1, 64, vT0, vZ, sC, 0x12)
    A("s_barrier")
    stamp(A, 2, vT0)
    A(f"""v_and_b32 v{vT0}, 31, v0
    v_lshlrev_b32 v{vSt}, 4, v{vT0}
    v_lshrrev_b32 v{vT0}, 5, v0
    v_lshl_add_u32 v{vSt}, v{vT0}, 10, v{vSt}
    s_mul_i32 s{sH}, s{sSUB}, 36864
    s_mul_i32 s{sT}, s{sW}, 9216
    s_add_u32 s{sH}, s{sH}, s{sT}
    s_add_u32 s{sH}, s{sH}, {H1}
    s_mov_b32 s{sLds}, s{sT}
    s_lshl_b32 s{sOut}, s{sSUB}, 5
    s_add_u32 s{sOut}, s{sOut}, s{sCU}
    s_lshl_b32 s{sOut}, s{sOut}, 13
    s_lshl_b32 s{sT}, s{sW}, 11
    s_add_u32 s{sOut}, s{sOut}, s{sT}
    s_mov_b32 s{sN}, 0""")
    vRd = 10
    def dma_h(buf_toggle):
        for i in range(9):
            A(f"s_add_u32 m0, s{sLds}, {i*1024}")
            A(f"s_add_u32 s{sT}, s{sH}, {i*1024}")
            A(f"buffer_load_dwordx4 v{vL16}, {WS}, s{sT} offen sc1 lds")
        A(f"s_add_u32 s{sH}, s{sH}, {2*36864}")
    dma_h(0)
    A(f"v_mov_b32 v{vRd}, v{vL16}")
    A(f"s_waitcnt vmcnt(0)")
    ACC = {0: 32, 1: 48, 2: 64}
    BF = [16, 20, 24, 28]
    A.label('L_P_LOOP')
    A("s_waitcnt vmcnt(7)")
    A("s_barrier")
    A(f"s_xor_b32 s{sLds}, s{sLds}, 0x10000")
    for i in range(3):
        A(f"ds_read_b128 {v(BF[i],4)}, v{vRd} offset:{i*1024}")
    for ks in range(36):
        if ks + 3 < 36:
            A(f"ds_read_b128 {v(BF[(ks+3)%4],4)}, v{vRd} offset:{(ks+3)*1024}")
        rem = min(3, 35 - ks)
        A(f"s_waitcnt lgkmcnt({rem})")
        b = v(BF[ks % 4], 4)
        for m_ in range(3):
            w = W((m_*36 + ks)*4, 4)
            d = v(ACC[m_], 16)
            c = '0' if ks == 0 else d
            if m_ == 1: A(f"v_mfma_f32_32x32x16_bf16 {d}, {b}, {w}, {c}")
            else:       A(f"v_mfma_f32_32x32x16_bf16 {d}, {w}, {b}, {c}")
        if ks < 18 and ks % 2 == 0:
            i = ks // 2
            A(f"s_add_u32 m0, s{sLds}, {i*1024}")
            A(f"s_add_u32 s{sT}, s{sH}, {i*1024}")
            A(f"buffer_load_dwordx4 v{vL16}, {WS}, s{sT} offen sc1 lds")
            if i == 8: A(f"s_add_u32 s{sH}, s{sH}, {2*36864}")
        if ks == 24:
            A(f"""s_waitcnt vmcnt(9)
            v_mov_b32 v{vT0}, s{sN}
            buffer_store_dword v{vT0}, v{vZ}, {WS}, s{sFl} offen sc1""")
    A(f"v_xor_b32 v{vRd}, 0x10000, v{vRd}")
    A.nop(9)
    def pack_qk(acc, tmp):
        for x in range(8):
            A(f"v_cvt_pk_bf16_f32 v{tmp+rotl3(x)}, v{acc+x}, v{acc+8+x}")
    pack_qk(ACC[0], 16)
    A(f"s_add_u32 s{sT}, s{sOut}, {KB}")
    A(f"buffer_store_dwordx4 {v(16,4)}, v{vSt}, {WS}, s{sT} offen sc1")
    A(f"buffer_store_dwordx4 {v(20,4)}, v{vSt}, {WS}, s{sT} offen offset:512 sc1")
    for y in range(8):
        A(f"v_cvt_pk_bf16_f32 v{24+y}, v{ACC[1]+2*y}, v{ACC[1]+2*y+1}")
    A(f"s_add_u32 s{sT}, s{sOut}, {VB}")
    A(f"buffer_store_dwordx4 {v(24,4)}, v{vL16}, {WS}, s{sT} offen sc1")
    A(f"buffer_store_dwordx4 {v(28,4)}, v{vL16}, {WS}, s{sT} offen offset:1024 sc1")
    pack_qk(ACC[2], ACC[0])
    A(f"s_add_u32 s{sT}, s{sOut}, {QB}")
    A(f"buffer_store_dwordx4 {v(ACC[0],4)}, v{vSt}, {WS}, s{sT} offen sc1")
    A(f"buffer_store_dwordx4 {v(ACC[0]+4,4)}, v{vSt}, {WS}, s{sT} offen offset:512 sc1")
    A(f"""s_add_u32 s{sOut}, s{sOut}, {64*8192}
    s_add_u32 s{sN}, s{sN}, 1
    s_cmp_lt_u32 s{sN}, 32
    s_cbranch_scc1 L_P_LOOP
    s_waitcnt vmcnt(0)
    v_mov_b32 v{vT0}, s{sN}
    buffer_store_dword v{vT0}, v{vZ}, {WS}, s{sFl} offen sc1""")
    stamp(A, 3, vT0)
    A("s_endpgm")

def arrive_init(A, vt, vz):
    l = A.newlab('AI')
    A(f"""s_cmp_lg_u32 s{sW}, 0
    s_cbranch_scc1 {l}
    v_mov_b32 v{vt}, 1
    s_mov_b64 exec, 1
    buffer_atomic_add v{vt}, v{vz}, {DBG}, 0 offen offset:{D_INIT}
    s_mov_b64 exec, -1""")
    A.label(l)
```

```python
from common import *

def red8(A, x, t):
    A.nop(2)
    A(f"v_add_f32_dpp v{t}, v{x}, v{x} quad_perm:[1,0,3,2] row_mask:0xf bank_mask:0xf")
    A.nop(2)
    A(f"v_add_f32_dpp v{x}, v{t}, v{t} quad_perm:[2,3,0,1] row_mask:0xf bank_mask:0xf")
    A.nop(2)
    A(f"v_add_f32_dpp v{t}, v{x}, v{x} row_half_mirror row_mask:0xf bank_mask:0xf")
    A(f"v_mov_b32 v{x}, v{t}")

def gen_mod_ln1(A):
    sAI, sT, sC, sT2 = 70, 71, 72, 73
    vZ, vTid, vT0, vT1, vT2, vXo = 1, 2, 3, 4, 5, 6
    mk_srd(A, SR0, PX, 2048*1152); mk_srd(A, SR1, PC, 1152); mk_srd(A, SR2, PWM, 576*6912)
    A(f"""v_mov_b32 v{vZ}, 0
    s_lshl_b32 s{sAI}, s{sSUB}, 5
    s_add_u32 s{sAI}, s{sAI}, s{sCU}
    s_lshl_b32 s{sT}, s{sW}, 6
    v_add_u32 v{vTid}, s{sT}, v0""")
    VC = 8
    VW = 12
    VX = 84
    A(f"""v_lshlrev_b32 v{vT0}, 1, v{vTid}
    buffer_load_ushort v{VC}, v{vT0}, {s(SR1,4)}, 0 offen
    buffer_load_ushort v{VC+1}, v{vT0}, {s(SR1,4)}, 0 offen offset:512
    buffer_load_ushort v{VC+2}, v{vT0}, {s(SR1,4)}, 0 offen offset:1024""")
    lskip = A.newlab('MODSKIP1')
    A(f"""s_cmp_ge_u32 s{sAI}, 54
    s_cbranch_scc1 {lskip}
    v_lshrrev_b32 v{vT0}, 3, v{vTid}
    v_mul_u32_u24 v{vT0}, {18*6912}, v{vT0}
    v_and_b32 v{vT1}, 7, v{vTid}
    v_lshl_add_u32 v{vT0}, v{vT1}, 4, v{vT0}
    s_lshl_b32 s{sT}, s{sAI}, 7""")
    for i in range(18):
        A(f"buffer_load_dwordx4 {v(VW+4*i,4)}, v{vT0}, {s(SR2,4)}, s{sT} offen")
        if i < 17: A(f"s_add_u32 s{sT}, s{sT}, 6912")
    A.label(lskip)
    A(f"""v_lshrrev_b32 v{vT0}, 3, v{vTid}
    v_mul_u32_u24 v{vXo}, 1152, v{vT0}
    v_and_b32 v{vT1}, 7, v0
    v_lshl_add_u32 v{vXo}, v{vT1}, 4, v{vXo}
    s_mul_i32 s{sT}, s{sAI}, {32*1152}""")
    for i in range(9):
        A(f"buffer_load_dwordx4 {v(VX+4*i,4)}, v{vXo}, {s(SR0,4)}, s{sT} offen offset:{128*i}")
    lskip2 = A.newlab('MODSKIP2')
    A(f"""s_cmp_ge_u32 s{sAI}, 54
    s_cbranch_scc1 {lskip2}""")
    A("s_waitcnt vmcnt(27)")
    for i in range(3):
        x = VC + i
        A(f"""v_lshlrev_b32 v{x}, 16, v{x}
        v_mul_f32 v{vT0}, 0xbfb8aa3b, v{x}
        v_exp_f32 v{vT0}, v{vT0}
        s_nop 0
        v_add_f32 v{vT0}, 1.0, v{vT0}
        v_rcp_f32 v{vT0}, v{vT0}
        s_nop 0
        v_mul_f32 v{x}, v{x}, v{vT0}""")
        rnd1(A, x, x)
    A(f"""v_lshlrev_b32 v{vT0}, 2, v{vTid}
    ds_write_b32 v{vT0}, v{VC}
    ds_write_b32 v{vT0}, v{VC+1} offset:1024
    ds_write_b32 v{vT0}, v{VC+2} offset:2048
    s_waitcnt lgkmcnt(0)
    s_barrier
    v_lshrrev_b32 v{vT0}, 3, v{vTid}
    v_mul_u32_u24 v{vT0}, 72, v{vT0}""")
    VS = 120
    for i in range(9):
        A(f"ds_read_b64 {v(VS+2*i,2)}, v{vT0} offset:{8*i}")
    VA = 140
    for j in range(8): A(f"v_mov_b32 v{VA+j}, 0")
    A("s_waitcnt lgkmcnt(0)")
    for i in range(18):
        A(f"s_waitcnt vmcnt({9+17-i})")
        for d in range(4):
            r = VW + 4*i + d
            A(f"""v_lshlrev_b32 v{vT1}, 16, v{r}
            v_and_b32 v{vT2}, 0xffff0000, v{r}
            v_fmac_f32 v{VA+2*d}, v{VS+i}, v{vT1}
            v_fmac_f32 v{VA+2*d+1}, v{VS+i}, v{vT2}""")
    A(f"""v_lshlrev_b32 v{vT0}, 5, v{vTid}
    ds_write_b128 v{vT0}, {v(VA,4)} offset:4096
    ds_write_b128 v{vT0}, {v(VA+4,4)} offset:4112
    s_waitcnt lgkmcnt(0)
    s_barrier""")
    lw = A.newlab('MODW')
    A(f"""s_cmp_lg_u32 s{sW}, 0
    s_cbranch_scc1 {lw}
    v_lshlrev_b32 v{vT0}, 2, v0""")
    for i in range(32):
        A(f"ds_read_b32 v{VW+i}, v{vT0} offset:{4096+256*i}")
        if i == 14 or i == 29: A("s_waitcnt lgkmcnt(0)")
    A("s_waitcnt lgkmcnt(0)")
    for st in (16, 8, 4, 2, 1):
        for i in range(st): A(f"v_add_f32 v{VW+i}, v{VW+i}, v{VW+i+st}")
    A(f"""v_cvt_pk_bf16_f32 v{VW}, v{VW}, v{VW}
    v_lshlrev_b32 v{vT0}, 1, v0
    s_lshl_b32 s{sT}, s{sAI}, 7
    s_add_u32 s{sT}, s{sT}, {MOD}
    buffer_store_short v{VW}, v{vT0}, {WS}, s{sT} offen sc1
    s_waitcnt vmcnt(0)
    v_mov_b32 v{vT0}, 1
    s_mov_b64 exec, 1
    buffer_atomic_add v{vT0}, v{vZ}, {DBG}, 0 offen offset:{D_MOD}
    s_mov_b64 exec, -1""")
    A.label(lw)
    A.label(lskip2)
    VY = 12
    A("s_waitcnt vmcnt(0)")
    for r in range(36):
        A(f"""v_lshlrev_b32 v{VY+2*r}, 16, v{VX+r}
        v_and_b32 v{VY+2*r+1}, 0xffff0000, v{VX+r}""")
    ln_core(A, VY, 72, 84, red8)
    wait_counter(A, D_MOD, 54, vT0, vZ, sC, 0x21)
    VSA, VCA = 84, 120
    A(f"""v_and_b32 v{vT0}, 7, v0
    v_lshlrev_b32 v{vT0}, 4, v{vT0}
    s_mov_b32 s{sT}, {MOD}""")
    for i in range(9):
        A(f"buffer_load_dwordx4 {v(VCA+4*i,4)}, v{vT0}, {WS}, s{sT} offen offset:{1152+128*i} sc1")
        A(f"buffer_load_dwordx4 {v(VSA+4*i,4)}, v{vT0}, {WS}, s{sT} offen offset:{128*i} sc1")
    A(f"""v_and_b32 v{vT0}, 7, v0
    v_lshlrev_b32 v{vXo}, 9, v{vT0}
    v_lshrrev_b32 v{vT0}, 3, v{vTid}
    v_lshl_add_u32 v{vXo}, v{vT0}, 4, v{vXo}
    s_mul_i32 s{sT}, s{sAI}, 36864
    s_add_u32 s{sT}, s{sT}, {H1}""")
    T = 160
    for i in range(9):
        A(f"s_waitcnt vmcnt({16-2*i+i})")
        for d in range(4):
            modulate(A, VY+8*i+2*d, VCA+4*i+d, VSA+4*i+d, VSA+4*i+d, T)
        A(f"buffer_store_dwordx4 {v(VSA+4*i,4)}, v{vXo}, {WS}, s{sT} offen sc1")
        A(f"s_add_u32 s{sT}, s{sT}, 4096")
    A(f"""s_waitcnt vmcnt(0)
    s_barrier""")
    l = A.newlab('H1A')
    A(f"""s_cmp_lg_u32 s{sW}, 0
    s_cbranch_scc1 {l}
    v_mov_b32 v{vT0}, 1
    s_mov_b64 exec, 1
    buffer_atomic_add v{vT0}, v{vZ}, {DBG}, 0 offen offset:{D_H1}
    s_mov_b64 exec, -1""")
    A.label(l)

def modulate(A, y, c, sh, dst, T):
    A(f"""v_lshlrev_b32 v{T}, 16, v{c}
    v_and_b32 v{T+1}, 0xffff0000, v{c}
    v_add_f32 v{T}, 1.0, v{T}
    v_add_f32 v{T+1}, 1.0, v{T+1}""")
    rnd2(A, T, T+1, T, T+1, T+2)
    A(f"""v_mul_f32 v{T}, v{T}, v{y}
    v_mul_f32 v{T+1}, v{T+1}, v{y+1}""")
    rnd2(A, T, T+1, T, T+1, T+2)
    A(f"""v_lshlrev_b32 v{T+2}, 16, v{sh}
    v_and_b32 v{T+3}, 0xffff0000, v{sh}
    v_add_f32 v{T}, v{T}, v{T+2}
    v_add_f32 v{T+1}, v{T+1}, v{T+3}
    v_cvt_pk_bf16_f32 v{dst}, v{T}, v{T+1}""")

def ln_core(A, VY, n, T, red):
    S, Q, M, D = T, T+1, T+2, T+3
    A(f"v_add_f32 v{S}, v{VY}, v{VY+1}")
    for i in range(2, n): A(f"v_add_f32 v{S}, v{S}, v{VY+i}")
    red(A, S, T+4)
    A(f"v_mul_f32 v{M}, 0x3ae38e39, v{S}")
    A(f"v_mov_b32 v{Q}, 0")
    for i in range(n):
        A(f"""v_sub_f32 v{D}, v{VY+i}, v{M}
        v_fmac_f32 v{Q}, v{D}, v{D}""")
    red(A, Q, T+4)
    A(f"v_mul_f32 v{Q}, 0x3ae38e39, v{Q}")
    rnd2(A, M, Q, M, Q, T+4)
    A(f"v_add_f32 v{Q}, 0x3727c5ac, v{Q}")
    rnd1(A, Q, Q)
    A(f"""v_sqrt_f32 v{Q}, v{Q}
    s_nop 0""")
    rnd1(A, Q, Q)
    A(f"""v_rcp_f32 v{Q}, v{Q}
    s_nop 0""")
    for i in range(0, n - 1, 2):
        A(f"""v_sub_f32 v{VY+i}, v{VY+i}, v{M}
        v_sub_f32 v{VY+i+1}, v{VY+i+1}, v{M}""")
        rnd2(A, VY+i, VY+i+1, VY+i, VY+i+1, D)
        A(f"""v_mul_f32 v{VY+i}, v{VY+i}, v{Q}
        v_mul_f32 v{VY+i+1}, v{VY+i+1}, v{Q}""")
        rnd2(A, VY+i, VY+i+1, VY+i, VY+i+1, D)
    if n % 2:
        i = n - 1
        A(f"v_sub_f32 v{VY+i}, v{VY+i}, v{M}")
        rnd1(A, VY+i, VY+i)
        A(f"v_mul_f32 v{VY+i}, v{VY+i}, v{Q}")
        rnd1(A, VY+i, VY+i)
```

```python
from common import *
import common
from role_p import arrive_init

L_MEM = 0; L_Q = 9216; L_K = 11264; L_S = 13312; L_SEL = 14464; L_DUM = 15488; L_W = 16384
L_O = L_Q
SC2 = 0x3e0293ee
MSK = "s[16:17]"

def gen_T(A):
    A.label('L_ROLE_T')
    W = WRegs(80)
    mk_srd(A, SR0, PWQ, 576*8192); mk_srd(A, SR1, PWK, 576*8192); mk_srd(A, SR2, PWV, 576*8192)
    mk_srd(A, SR3, PWO, 4096*1152); mk_srd(A, SR4, PMEM0, 9216)
    sLds, sT, sC, sS, sUnit = 70, 71, 72, 73, 74
    sB = [75, 76, 77, 78]; sB8 = 79; sWo = 80
    sH1S, sH1L, sM2R, sM2N, sM2P = 81, 82, 83, 84, 85
    sKV, sEX, sFT, sT2, sRed, sT3, sSC, sU7, sH7, sRZ = 86, 87, 88, 89, 90, 91, 92, 93, 94, 95
    vIDX, vAF, vL16, vBF, vWL, vFL, vDM, vQW, vKW, vSW, vSR, vKX, vVX, vH1a, vH1b, vAM = range(16)
    RA0, RA1, B0, B1, B2, ST0, KX, MX, AQ, AK, AV = 16, 20, 24, 28, 32, 36, 44, 52, 56, 64, 72
    vPub, vC8, X = 32, 33, 34
    lane = 60; t0, t1, t2, vZ = 61, 62, 63, 64
    vDma, vDmo, vDm8, vTr, vDc8 = 65, 66, 67, 68, 69
    A(f"v_mov_b32 v{lane}, v0")
    A("s_mov_b32 s16, 0x00ff00ff\n s_mov_b32 s17, 0x00ff00ff")
    def bits(dst, spec, acc=False, src=lane, tmp=t0):
        first = not acc
        for (lo, n, sh) in spec:
            A(f"v_bfe_u32 v{tmp}, v{src}, {lo}, {n}")
            if first: A(f"v_lshlrev_b32 v{dst}, {sh}, v{tmp}"); first = False
            else: A(f"v_lshl_add_u32 v{dst}, v{tmp}, {sh}, v{dst}")
    bits(vDma, [(2, 1, 17), (5, 1, 15), (3, 2, 13), (0, 2, 4)])
    bits(vDc8, [(3, 2, 15), (5, 1, 14), (2, 1, 13), (0, 2, 4)])
    A(f"""s_mul_i32 s{sLds}, s{sW}, 36864
    s_add_u32 s{sLds}, s{sLds}, {L_W}
    s_lshl_b32 s{sB8}, s{sCU}, 8
    s_lshl_b32 s{sT}, s{sW}, 6
    s_add_u32 s{sB8}, s{sB8}, s{sT}""")
    for b in range(4):
        A(f"""s_xor_b32 s{sT}, s{sW}, {b}
        s_mul_i32 s{sT}, s{sT}, {144*8192}
        s_add_u32 s{sB[b]}, s{sB8}, s{sT}""")
    bits(vTr, [(5, 1, 10), (3, 1, 9), (4, 1, 8), (2, 1, 6), (0, 2, 3)])
    A(f"v_add_u32 v{vTr}, s{sLds}, v{vTr}")
    bits(t1, [(4, 1, 4), (5, 1, 2), (2, 2, 0)])
    A(f"v_mul_u32_u24 v{vDmo}, 1152, v{t1}")
    A(f"v_mov_b32 v{vDm8}, v{vDmo}")
    bits(vDmo, [(0, 2, 4)], acc=True)
    bits(vDm8, [(0, 1, 4)], acc=True)
    A(f"""v_bfe_u32 v{t0}, v{lane}, 1, 1
    v_mul_u32_u24 v{t0}, {64*1152}, v{t0}
    v_add_u32 v{vDm8}, v{vDm8}, v{t0}
    s_mul_i32 s{sWo}, s{sCU}, {128*1152}
    s_mul_i32 s{sT}, s{sW}, 288
    s_add_u32 s{sWo}, s{sWo}, s{sT}
    v_lshlrev_b32 v{vL16}, 4, v{lane}
    v_add_u32 v{vWL}, s{sLds}, v{vL16}""")

    LDSJ = [('q', 0), ('k', 0), ('q', 2), ('q', 4), ('q', 6), ('q', 8), ('o', 0, 0), ('o', 2, 0), ('o', 3, 0)]
    alljobs = [(m, i) for m in 'qkv' for i in range(9)] + [('o', y, kk) for y in range(4) for kk in range(2)] + [('o', 4)]
    regjobs = [j for j in alljobs if j not in LDSJ]
    assert len(regjobs) == 27
    loc = {}
    jobs = []
    def mkjob(j, dsts, post=None):
        dma = []
        for ga in range(4):
            if j[0] in 'qkv':
                srd = {'q': SR0, 'k': SR1, 'v': SR2}[j[0]]; i = j[1]
                if i < 8: dma.append((srd, vDma, sB[i >> 1], (8*(ga >> 1) + 32*(ga & 1) + 64*(i & 1))*8192, ga*1024))
                else: dma.append((srd, vDc8, sB8, (144*ga + 128)*8192, ga*1024))
            elif len(j) == 3:
                y, kk = j[1], j[2]
                dma.append((SR3, vDmo, sWo, (64*kk + 32*(ga >> 1) + 8*(ga & 1))*1152 + y*64, ga*1024))
            else:
                dma.append((SR3, vDm8, sWo, (32*(ga >> 1) + 8*(ga & 1))*1152 + 256, ga*1024))
        reads = []
        for tau in range(2):
            for y in range(4):
                reads.append((dsts(tau, y), vTr, (32*(y >> 1) + 2*(y & 1))*64 + tau*32))
        return dict(dma=dma, reads=reads, post=post)
    for n, j in enumerate(regjobs):
        for tau in range(2): loc[(j, tau)] = ('r', W(n*16 + tau*8, 8))
        jobs.append(mkjob(j, lambda tau, y, n=n: W(n*16 + tau*8 + 2*y, 2)))
    for n, j in enumerate(LDSJ):
        for tau in range(2): loc[(j, tau)] = ('l', n*4096 + tau*2048)
        post = [(lambda sb, q=q: f"ds_write_b128 v{vWL}, {v(16+4*q,4)} offset:{sb+q*1024}") for q in range(4)] + ["s_waitcnt lgkmcnt(0)"]
        jobs.append(mkjob(j, lambda tau, y: v(16 + tau*8 + 2*y, 2), post))

    bits(vAF, [(4, 2, 8), (1, 1, 7), (2, 2, 5), (0, 1, 4)])
    bits(vPub, [(4, 2, 5), (0, 3, 2)])
    A(f"""v_mov_b32 v{vZ}, 0
    s_lshl_b32 s{sUnit}, s{sW}, 5
    s_add_u32 s{sUnit}, s{sUnit}, s{sCU}
    s_cmp_lt_u32 s{sUnit}, 72
    s_cselect_b32 s{sRed}, 1, 0
    s_lshl_b32 s{sH7}, s{sCU}, 7
    s_lshl_b32 s{sU7}, s{sUnit}, 7
    s_lshl_b32 s{sT}, s{sW}, 2
    s_add_u32 s{sFT}, s{sH7}, s{sT}
    s_add_u32 s{sFT}, s{sFT}, {FT}
    s_lshl_b32 s{sH1L}, s{sUnit}, 12
    s_add_u32 s{sH1L}, s{sH1L}, {P1}
    buffer_store_dword v{vZ}, v{vZ}, {WS}, s{sFT} offen sc1
    s_cmp_eq_u32 s{sRed}, 0
    s_cbranch_scc1 L_T_NOINIT""")
    for q in range(4): A(f"v_mov_b32 v{16+q}, -1")
    A(f"s_add_u32 s{sT}, s{sH1L}, 0x80000")
    for q in range(4):
        A(f"buffer_store_dwordx4 {v(16,4)}, v{vL16}, {WS}, s{sH1L} offen offset:{q*1024}")
        A(f"buffer_store_dwordx4 {v(16,4)}, v{vL16}, {WS}, s{sT} offen offset:{q*1024}")
    A(f"""s_cmp_ge_u32 s{sUnit}, 64
    s_cbranch_scc1 L_T_M0B""")
    bits(t1, [(4, 1, 0)])
    A(f"v_mul_u32_u24 v{t1}, 1152, v{t1}")
    bits(t1, [(5, 1, 6), (0, 3, 1)], acc=True)
    A(f"""s_bfe_u32 s{sT}, s{sUnit}, 0x20001
    s_mul_i32 s{sT}, s{sT}, 2304
    s_bfe_u32 s{sT2}, s{sUnit}, 0x20003
    s_mul_i32 s{sT2}, s{sT2}, 288
    s_add_u32 s{sT}, s{sT}, s{sT2}
    s_bfe_u32 s{sT2}, s{sUnit}, 0x10005
    s_lshl_b32 s{sT2}, s{sT2}, 7
    s_add_u32 s{sT}, s{sT}, s{sT2}
    s_and_b32 s{sT2}, s{sUnit}, 1
    s_lshl_b32 s{sT2}, s{sT2}, 4
    s_add_u32 s{sT}, s{sT}, s{sT2}
    buffer_load_ushort v{t2}, v{t1}, {s(SR4,4)}, s{sT} offen
    buffer_load_ushort v{t0}, v{t1}, {s(SR4,4)}, s{sT} offen offset:32
    s_waitcnt vmcnt(0)
    v_lshl_add_u32 v{t2}, v{t0}, 16, v{t2}
    s_branch L_T_M0C""")
    A.label('L_T_M0B')
    bits(t1, [(2, 1, 1), (4, 1, 0)])
    A(f"v_mul_u32_u24 v{t1}, 1152, v{t1}")
    bits(t1, [(0, 2, 3), (5, 1, 2)], acc=True)
    A(f"""s_bfe_u32 s{sT}, s{sUnit}, 0x20001
    s_mul_i32 s{sT}, s{sT}, 288
    s_and_b32 s{sT2}, s{sUnit}, 1
    s_mul_i32 s{sT2}, s{sT2}, 4608
    s_add_u32 s{sT}, s{sT}, s{sT2}
    buffer_load_dword v{t2}, v{t1}, {s(SR4,4)}, s{sT} offen offset:256
    s_waitcnt vmcnt(0)""")
    A.label('L_T_M0C')
    A(f"""s_mov_b64 exec, {MSK}
    s_add_u32 s{sT}, s{sU7}, {M2}
    buffer_store_dword v{t2}, v{vPub}, {WS}, s{sT} offen
    s_add_u32 s{sT}, s{sU7}, {M2+9216}
    buffer_store_dword v16, v{vPub}, {WS}, s{sT} offen
    s_add_u32 s{sT}, s{sU7}, {M2+18432}
    buffer_store_dword v16, v{vPub}, {WS}, s{sT} offen
    s_mov_b64 exec, -1""")
    A.label('L_T_NOINIT')
    A(f"""s_waitcnt vmcnt(0)
    s_barrier""")
    arrive_init(A, t0, vZ)

    load_frags(A, jobs, 9, 4096, sLds, sT)
    stamp(A, 1, t0)

    A(f"""v_bfe_u32 v{t0}, v{lane}, 1, 1
    v_mul_u32_u24 v{t0}, 0xAAAA, v{t0}
    v_add_u32 v{vIDX}, 0x4444, v{t0}
    s_lshl_b32 s{sT}, s{sW}, 9""")
    bits(vBF, [(4, 2, 7), (0, 3, 4)])
    bits(vQW, [(2, 2, 7), (4, 2, 5), (0, 2, 2)])
    A(f"v_add_u32 v{vQW}, s{sT}, v{vQW}")
    A(f"v_add_u32 v{vQW}, {L_Q}, v{vQW}")
    bits(vKW, [(3, 1, 8), (0, 1, 7), (4, 2, 5), (1, 2, 2)])
    A(f"v_add_u32 v{vKW}, s{sT}, v{vKW}")
    A(f"v_add_u32 v{vKW}, {L_K}, v{vKW}")
    bits(t1, [(4, 2, 0)])
    A(f"v_mul_u32_u24 v{vSW}, 288, v{t1}")
    bits(vSW, [(0, 3, 2)], acc=True)
    A(f"""s_lshl_b32 s{sT}, s{sW}, 5
    s_add_u32 s{sT}, s{sT}, {L_S}
    v_add_u32 v{vSW}, s{sT}, v{vSW}""")
    bits(t1, [(0, 3, 0)])
    A(f"v_mul_u32_u24 v{vSR}, 144, v{t1}")
    bits(vSR, [(4, 2, 5)], acc=True)
    bits(vKX, [(3, 1, 12), (4, 2, 9), (2, 1, 7), (0, 2, 4)])
    bits(vVX, [(4, 2, 9), (0, 4, 4)])
    A(f"""s_lshl_b32 s{sT}, s{sW}, 11
    s_add_u32 s{sT}, s{sT}, {VB-KB}
    v_add_u32 v{vVX}, s{sT}, v{vVX}""")
    bits(vH1a, [(3, 3, 12), (0, 3, 4)])
    A(f"""s_lshl_b32 s{sT}, s{sW}, 15
    v_add_u32 v{vH1a}, s{sT}, v{vH1a}""")
    bits(vH1b, [(5, 1, 12), (0, 5, 2)])
    A(f"""s_lshl_b32 s{sT}, s{sW}, 13
    s_add_u32 s{sT}, s{sT}, {64*4096}
    v_add_u32 v{vH1b}, s{sT}, v{vH1b}""")
    bits(vAM, [(2, 2, 8), (4, 2, 6), (0, 1, 5), (1, 1, 4)])
    A(f"""v_bfe_u32 v{t0}, v{lane}, 2, 1
    v_lshlrev_b32 v{t0}, 4, v{t0}
    v_mov_b32 v{t1}, 0x3f80
    v_lshlrev_b32 v{t1}, v{t0}, v{t1}
    v_and_b32 v{t0}, 1, v{lane}
    v_bfe_u32 v{t2}, v{lane}, 3, 1
    v_lshl_add_u32 v{t0}, v{t2}, 1, v{t0}""")
    for q in range(4):
        A(f"""v_cmp_eq_u32 vcc, {q}, v{t0}
        s_nop 1
        v_cndmask_b32 v{16+q}, 0, v{t1}, vcc""")
    A(f"ds_write_b128 v{vL16}, {v(16,4)} offset:{L_SEL}")
    A(f"""s_add_u32 s{sH1S}, s{sH7}, {P1}
    s_lshl_b32 s{sH1L}, s{sCU}, 12
    s_add_u32 s{sH1L}, s{sH1L}, {P1}
    s_add_u32 s{sRZ}, s{sH1L}, 0x80000
    s_mov_b32 s{sM2R}, {M2}
    s_mov_b32 s{sM2N}, {M2+9216}
    s_mov_b32 s{sM2P}, {M2+18432}
    s_lshl_b32 s{sKV}, s{sCU}, 13
    s_add_u32 s{sKV}, s{sKV}, {KB}
    s_lshl_b32 s{sEX}, s{sCU}, 12
    s_add_u32 s{sEX}, s{sEX}, {KM - 32*4096}
    s_mov_b32 s{sSC}, {SC2}
    s_mov_b32 s{sS}, 0""")
    wait_counter(A, D_INIT, 256, t0, vZ, sC, 0x01)
    def flag_load(skap):
        A(f"""s_lshl_b32 s{sT3}, s{skap}, 12
        s_add_u32 s{sT3}, s{sT3}, s{sH7}
        buffer_load_dword v{vFL}, v{vL16}, {WS}, s{sT3} offen offset:{FP} sc1""")
    def wait_flags(skap, sneed, err, first_loaded):
        l0 = A.newlab('TF'); l1 = A.newlab('TFD')
        if first_loaded:
            A(f"v_cmp_gt_u32 vcc, s{sneed}, v{vFL}\n s_cbranch_vccz {l1}")
        A(f"s_mov_b32 s{sC}, {SPIN}")
        A.label(l0)
        flag_load(skap)
        A(f"""s_waitcnt vmcnt(0)
        v_cmp_gt_u32 vcc, s{sneed}, v{vFL}
        s_cbranch_vccz {l1}
        s_sub_u32 s{sC}, s{sC}, 1
        s_cmp_lg_u32 s{sC}, 0
        s_cbranch_scc1 {l0}
        s_mov_b32 s{sERR}, {err}
        s_branch L_ABORT""")
        A.label(l1)
    def touch(sbase_off):
        A(f"""v_lshlrev_b32 v{vDM}, {common.PFSH}, v{vL16}
        s_mov_b32 m0, {L_DUM}
        s_add_u32 s{sT}, s{sKV}, {sbase_off}""")
        step = 1024 << common.PFSH
        for base in (0, VB - KB):
            for o in range(0, 8192, step):
                A(f"s_add_u32 s{sT2}, s{sT}, {base+o}")
                A(f"buffer_load_dword v{vDM}, {WS}, s{sT2} offen sc1 lds")
    A(f"""s_cmp_lg_u32 s{sW}, 3
    s_cbranch_scc1 L_T_W0""")
    A(f"s_mov_b64 exec, 15\n s_mov_b32 s{sT}, 1\n s_mov_b32 s{sT2}, 1")
    wait_flags(sT, sT2, 0x02, False)
    A(f"s_mov_b32 s{sT}, 0")
    wait_flags(sT, sT2, 0x02, False)
    A("s_mov_b64 exec, -1")
    touch(0); touch(32*8192)
    A("s_waitcnt vmcnt(0)")
    A.label('L_T_W0')
    A("s_waitcnt lgkmcnt(0)")
    A("s_barrier")
    stamp(A, 2, t0)
    for w in range(1, 4):
        A(f"s_cmp_eq_u32 s{sW}, {w}\n s_cbranch_scc1 L_T_PRE{w}")

    TSP = [4,6,8,10,12,14,18,20,22,24,26,28,30,32,34]
    def ts(i):
        if common.DEV and common.TS: A(f"s_memtime s[{TSP[i]}:{TSP[i]+1}]")

    def gen_loop(w):
        L = lambda n: f"L_T_{n}{w}"
        def tsdump():
            if not (common.DEV and common.TS): return
            A(f"""s_cmp_lg_u32 s{sS}, 41
            s_cbranch_scc1 {L('NODUMP')}
            s_waitcnt lgkmcnt(0)
            s_lshl_b32 s96, s{sCU}, 8
            s_add_u32 s96, s96, {STAMP2 + w*64}
            v_mov_b32 v35, 0""")
            for i in range(15):
                A(f"v_mov_b32 v34, s{TSP[i]}")
                A(f"buffer_store_dword v34, v35, {WS}, s96 offen offset:{4*i}")
                A("s_nop 1")
            A.label(L('NODUMP'))
        D = Cnt(A, 'lgkmcnt', 15)
        V = Cnt(A, 'vmcnt', 63)
        stg = {}
        def wread1(key, dst, half):
            kind, off = loc[key]; assert kind == 'l'
            D.op(f"ds_read_b128 {v(dst+4*half,4)}, v{vWL} offset:{off+1024*half}", ('w', key))
            stg[key] = dst
        def wread(key, dst):
            wread1(key, dst, 0); wread1(key, dst, 1)
        def smf(acc, areg, key):
            kind, x = loc[key]
            if kind == 'l':
                D.need(('w', key)); b = v(stg[key], 8)
            else: b = x
            A(f"v_smfmac_f32_16x16x64_bf16 {v(acc,4)}, {v(areg,4)}, {b}, v{vIDX}")
        def zero(r, n):
            for i in range(0, n, 2): A(f"v_mov_b64 {v(r+i,2)}, 0")
        def pkadd(r):
            A(f"v_pk_add_f32 {v(r,2)}, {v(r,2)}, {v(r+2,2)}")
        def delay(n):
            if n: A(f"s_sleep {n}")
        q_, k_, v_ = (lambda i, t: (('q', i), t)), (lambda i, t: (('k', i), t)), (lambda i, t: (('v', i), t))
        o_ = lambda t, kk: ((('o', t >> 1, kk), t & 1) if t < 8 else (('o', 4), kk))
        chunk = lambda i: 8 if i == 8 else (w ^ (i >> 1)) + 4*(i & 1)
        def aread(i, dst):
            D.op(f"ds_read_b128 {v(dst,4)}, v{vL16} offset:{L_MEM+1024*chunk(i)}", ('a', i))
        def vv(i, reg):
            D.need(('a', i)); smf(AV, reg, v_(i, 0)); smf(AV+4, reg, v_(i, 1))
        def prefetch_q():
            wread(q_(0, 0), B0); wread(q_(0, 1), ST0); wread(k_(0, 0), KX); wread(k_(0, 1), AV)
            if w == 2:
                bits(vC8, [(7, 3, 7), (4, 1, 6), (5, 2, 4)], src=vL16, tmp=vDM)

        A.label(L('PRE'))
        prefetch_q()
        zero(AQ, 16)
        A.label(L('LOOP'))
        A(f"""s_add_u32 s{sT2}, s{sM2R}, 4096
        s_add_u32 s{sT}, s{sM2R}, 8192
        s_mov_b32 s{sC}, {SPIN}""")
        D.drain()
        ts(0)
        if w != 1:
            A.label(L('POLL2'))
            A(f"buffer_load_dwordx4 {v(RA0,4)}, v{vAM}, {WS}, s{sM2R} offen offset:{w*1024} sc1")
            if w == 2: A(f"buffer_load_dwordx4 {v(RA1,4)}, v{vL16}, {WS}, s{sT} offen sc1")
            if w == 3: A(f"buffer_load_dwordx4 {v(RA1,4)}, v{vAM}, {WS}, s{sM2R} offen offset:1024 sc1")
            A(f"""s_sub_u32 s{sC}, s{sC}, 1
            s_cmp_eq_u32 s{sC}, 0
            s_cbranch_scc1 L_T_TO2
            s_waitcnt vmcnt({1 if w else 0})
            ds_write_b128 v{vL16}, {v(RA0,4)} offset:{L_MEM+w*1024}
            v_max3_u32 v{X}, v{RA0}, v{RA0+1}, v{RA0+2}""")
            if w == 0:
                A(f"v_max_u32 v{X}, v{X}, v{RA0+3}")
            else:
                A("s_waitcnt vmcnt(0)")
                if w == 2: A(f"ds_write_b128 v{vC8}, {v(RA1,4)} offset:{L_MEM+8192}")
                else: A(f"ds_write_b128 v{vL16}, {v(RA1,4)} offset:{L_MEM+1024}")
                A(f"""v_max3_u32 v{X}, v{X}, v{RA0+3}, v{RA1}
                v_max3_u32 v{X}, v{X}, v{RA1+1}, v{RA1+2}
                v_max_u32 v{X}, v{X}, v{RA1+3}""")
            A(f"""v_cmp_eq_u32 vcc, -1, v{X}
            s_cbranch_vccnz {L('POLL2')}""")
            D.q = ['mw']
        V.reset()
        ts(1)
        side = []
        def own0():
            smf(AQ, RA0, q_(0, 0)); smf(AQ+4, RA0, q_(0, 1))
            wread(q_(2, 0), ST0)
            smf(AK, RA0, k_(0, 0))
            wread(q_(2, 1), KX)
            smf(AK+4, RA0, k_(0, 1))
            wread(q_(4, 0), AV)
        if w != 1:
            smf(AQ, RA0, q_(0, 0)); smf(AQ+4, RA0, q_(0, 1))
            D.need('mw')
            A("s_barrier"); ts(2)
            aread(2, B0); aread(4, B1)
            smf(AK, RA0, k_(0, 0))
            wread(q_(2, 0), ST0)
            smf(AK+4, RA0, k_(0, 1))
            wread(q_(2, 1), KX); aread(6, B2); wread(q_(4, 0), AV); aread(8, RA0)
        else:
            A("s_barrier"); ts(2)
            aread(0, RA0); aread(6, B2)
            D.need(('a', 0))
            smf(AQ, RA0, q_(0, 0))
            aread(2, B0); aread(4, B1)
            smf(AQ+4, RA0, q_(0, 1))
            wread(q_(2, 0), ST0)
            smf(AK, RA0, k_(0, 0))
            wread(q_(2, 1), KX)
            smf(AK+4, RA0, k_(0, 1))
            wread(q_(4, 0), AV); aread(8, RA0)
        def poll2b():
            V.op(f"buffer_load_dwordx4 {v(RA1,4)}, v{vAM}, {WS}, s{sT2} offen offset:{w*1024} sc1", 'p2b')
        def ex(): V.op(f"buffer_store_dwordx4 {v(MX,4)}, v{vL16}, {WS}, s{sEX} offen offset:{w*1024} sc1")
        def flag():
            A(f"s_max_u32 s{sT}, s{sS}, 1\n s_sub_u32 s{sT}, s{sT}, 1\n s_mov_b64 exec, 1\n v_mov_b32 v{vDM}, s{sT}")
            V.op(f"buffer_store_dword v{vDM}, v{vL16}, {WS}, s{sFT} offen sc1")
            A("s_mov_b64 exec, -1")
        def neg(): A(f"v_mov_b64 {v(MX,2)}, -1\n v_mov_b64 {v(MX+2,2)}, -1")
        def rst(u, q):
            def f():
                A(f"s_add_u32 s{sT}, s{sRZ}, {u*32*4096}")
                V.op(f"buffer_store_dwordx4 {v(MX,4)}, v{vL16}, {WS}, s{sT} offen offset:{q*1024}")
            return f
        def rstm():
            A(f"s_add_u32 s{sT}, s{sM2P}, s{sH7}\n s_mov_b64 exec, 0xff")
            V.op(f"buffer_store_dwordx4 {v(MX,4)}, v{vL16}, {WS}, s{sT} offen")
            A(f"s_add_u32 s{sT}, s{sT}, 4096")
            V.op(f"buffer_store_dwordx4 {v(MX,4)}, v{vL16}, {WS}, s{sT} offen")
            A("s_mov_b64 exec, -1")
        side = [ex, flag, neg] + {0: [rst(0,0), rst(0,1), rst(0,2), rst(0,3)], 1: [rst(1,0), rst(1,1)], 2: [rstm], 3: [rst(1,2), rst(1,3)]}[w]
        xs = [(AK, B0, k_(2,0)), (AQ, B0, q_(2,0)), (AK+4, B0, k_(2,1)), (AQ+4, B0, q_(2,1)),
              (AK, B1, k_(4,0)), (AQ, B1, q_(4,0)), (AK+4, B1, k_(4,1)), (AQ+4, B1, q_(4,1)),
              (AK, B2, k_(6,0)), (AQ, B2, q_(6,0)), (AK+4, B2, k_(6,1)), (AQ+4, B2, q_(6,1)),
              (AK, RA0, k_(8,0)), (AQ, RA0, q_(8,0)), (AK+4, RA0, k_(8,1)), (AQ+4, RA0, q_(8,1))]
        nxt = {1: (q_(4,1), ST0), 3: (q_(6,0), KX), 5: (q_(6,1), AV), 7: (q_(8,0), ST0), 11: (q_(8,1), AV)}
        for n, (acc, ar, key) in enumerate(xs):
            if n == common.P2B: poll2b()
            if n % 4 == 0: D.need(('a', key[0][1]))
            smf(acc, ar, key)
            if n in nxt: wread(*nxt[n])
            if n >= common.P2B and side: side.pop(0)()
            if n == common.C2B:
                while side: side.pop(0)()
                ts(3)
                V.need('p2b')
                A(f"s_branch {L('CHK2B')}")
                A.label(L('POLL2B'))
                A(f"""buffer_load_dwordx4 {v(RA1,4)}, v{vAM}, {WS}, s{sT2} offen offset:{w*1024} sc1
                s_sub_u32 s{sC}, s{sC}, 1
                s_cmp_eq_u32 s{sC}, 0
                s_cbranch_scc1 L_T_TO2
                s_waitcnt vmcnt(0) lgkmcnt(0)""")
                A.label(L('CHK2B'))
                D.op(f"ds_write_b128 v{vL16}, {v(RA1,4)} offset:{L_MEM+4096+w*1024}", 'mw2')
                A(f"""v_max3_u32 v{vDM}, v{RA1}, v{RA1+1}, v{RA1+2}
                v_max_u32 v{vDM}, v{vDM}, v{RA1+3}
                v_cmp_eq_u32 vcc, -1, v{vDM}
                s_cbranch_vccnz {L('POLL2B')}""")
                kxo = (w >> 1)*256 + (w & 1)*64
                assert common.C2B >= 9
                V.op(f"buffer_load_dwordx4 {v(KX,4)}, v{vKX}, {WS}, s{sKV} offen offset:{kxo} sc1", 'kx')
                V.op(f"buffer_load_dwordx4 {v(KX+4,4)}, v{vKX}, {WS}, s{sKV} offen offset:{kxo+2048} sc1", 'kx')
        D.need('mw2')
        A("s_barrier"); ts(4)
        aread(3, B0); aread(5, B1)
        smf(AQ, RA1, q_(1, 0))
        aread(7, B2)
        smf(AQ+4, RA1, q_(1, 1))
        if w == 2:
            A(f"s_cmp_eq_u32 s{sRed}, 0\n s_cbranch_scc1 {L('NORST')}")
            A(f"s_add_u32 s{sT}, s{sRZ}, {64*4096}")
            for q in range(4): A(f"buffer_store_dwordx4 {v(MX,4)}, v{vL16}, {WS}, s{sT} offen offset:{q*1024}")
            A(f"s_add_u32 s{sT}, s{sM2P}, s{sU7}\n s_mov_b64 exec, 0xff")
            A(f"buffer_store_dwordx4 {v(MX,4)}, v{vL16}, {WS}, s{sT} offen")
            A("s_mov_b64 exec, -1")
            A.label(L('NORST'))
        zero(AV, 8)
        smf(AK, RA1, k_(1, 0)); smf(AK+4, RA1, k_(1, 1))
        for i, b in ((3, B0), (5, B1), (7, B2)):
            D.need(('a', i)); smf(AQ, b, q_(i, 0)); smf(AQ+4, b, q_(i, 1))
        smf(AK, B0, k_(3, 0)); smf(AK+4, B0, k_(3, 1))
        zero(ST0, 8)
        A.nop(1)
        pkadd(AQ); pkadd(AQ+4)
        A(f"v_cvt_pk_bf16_f32 v{AQ}, v{AQ}, v{AQ+4}")
        A(f"v_cvt_pk_bf16_f32 v{AQ+1}, v{AQ+1}, v{AQ+5}")
        D.op(f"ds_write2_b32 v{vQW}, v{AQ}, v{AQ+1} offset0:0 offset1:4", 'qw')
        smf(AK, B1, k_(5, 0)); smf(AK+4, B1, k_(5, 1))
        smf(AK, B2, k_(7, 0)); smf(AK+4, B2, k_(7, 1))
        D.need('qw')
        A("s_barrier"); ts(5)
        D.op(f"ds_read_b128 {v(AQ,4)}, v{vAF} offset:{L_Q}", 'qa')
        D.op(f"ds_read_b128 {v(AQ+4,4)}, v{vAF} offset:{L_Q+1024}", 'qa')
        vv(3, B0); vv(5, B1)
        D.need('qa'); V.need('kx')
        A(f"v_smfmac_f32_16x16x64_bf16 {v(ST0,4)}, {v(AQ,4)}, {v(KX,8)}, v{vIDX}")
        D.op(f"ds_read_b128 {v(AQ,4)}, v{vBF} offset:{L_Q}", 'qb')
        A(f"v_smfmac_f32_16x16x64_bf16 {v(ST0+4,4)}, {v(AQ+4,4)}, {v(KX,8)}, v{vIDX}")
        D.op(f"ds_read_b128 {v(AQ+4,4)}, v{vBF} offset:{L_Q+512}", 'qb')
        V.op(f"buffer_load_dwordx4 {v(KX,4)}, v{vVX}, {WS}, s{sKV} offen sc1", 'vx')
        pkadd(AK); pkadd(AK+4)
        A(f"v_cvt_pk_bf16_f32 v{MX}, v{AK}, v{AK+4}")
        A(f"v_cvt_pk_bf16_f32 v{MX+1}, v{AK+1}, v{AK+5}")
        V.op(f"buffer_load_dwordx4 {v(KX+4,4)}, v{vVX}, {WS}, s{sKV} offen offset:256 sc1", 'vx')
        D.op(f"ds_write2_b32 v{vKW}, v{MX}, v{MX+1} offset0:0 offset1:4", 'kw')
        pkadd(ST0); pkadd(ST0+4)
        D.op(f"ds_read_b128 {v(B0,4)}, v{vBF} offset:{L_Q+1024}", 'qb')
        A(f"s_mov_b64 exec, {MSK}")
        A(f"v_add_f32_dpp v{ST0}, v{ST0+4}, v{ST0} row_ror:8 row_mask:0xf bank_mask:0xf bound_ctrl:0" if False else "s_mov_b64 exec, -1")
        A(f"v_add_f32_dpp v{ST0}, v{ST0+4}, v{ST0} row_ror:8 row_mask:0xf bank_mask:0xf")
        A(f"v_add_f32_dpp v{ST0+1}, v{ST0+5}, v{ST0+1} row_ror:8 row_mask:0xf bank_mask:0xf")
        A(f"s_mov_b64 exec, {MSK}")
        D.op(f"ds_write2_b32 v{vSW}, v{ST0}, v{ST0+1} offset0:0 offset1:36", 'sw')
        A(f"s_mov_b64 exec, -1")
        smf(AV, B2, v_(7, 0))
        D.op(f"ds_read_b128 {v(B1,4)}, v{vBF} offset:{L_Q+1024+512}", 'qb')
        smf(AV+4, B2, v_(7, 1))
        smf(AV, RA0, v_(8, 0))
        SM = B2
        zero(SM, 4)
        smf(AV+4, RA0, v_(8, 1))
        D.need('sw', 'qb')
        A("s_barrier"); ts(6)
        D.op(f"ds_read_b128 {v(AK,4)}, v{vAF} offset:{L_K}", 'ka')
        D.op(f"ds_read_b128 {v(AK+4,4)}, v{vAF} offset:{L_K+1024}", 'ka')
        D.op(f"ds_read_b128 {v(ST0,4)}, v{vSR} offset:{L_S}", 'sr')
        smf(AV, RA1, v_(1, 0))
        D.op(f"ds_read_b128 {v(ST0+4,4)}, v{vSR} offset:{L_S+16}", 'sr')
        aread(0, RA0)
        smf(AV+4, RA1, v_(1, 1))
        aread(2, RA1)
        if w == 3:
            A(f"""s_min_u32 s{sT2}, s{sS}, 60
            s_and_b32 s{sT}, s{sT2}, 1
            s_lshr_b32 s{sT2}, s{sT2}, 1
            s_add_u32 s{sT2}, s{sT2}, 2
            s_mov_b64 exec, 15""")
            wait_flags(sT, sT2, 0x03, True)
            A(f"s_add_u32 s{sT}, s{sS}, 1\n s_min_u32 s{sT}, s{sT}, 60\n s_and_b32 s{sT}, s{sT}, 1")
            flag_load(sT); V.q.append(None)
            A("s_mov_b64 exec, -1")
            touch(2*32*8192)
            V.q += [None] * (2 * (8192 // (1024 << common.PFSH)))
        D.need('ka'); ts(7)
        A(f"v_smfmac_f32_16x16x64_bf16 {v(SM,4)}, {v(AK,4)}, {v(AQ,8)}, v{vIDX}")
        aread(4, AK)
        A(f"v_smfmac_f32_16x16x64_bf16 {v(SM,4)}, {v(AK+4,4)}, {v(B0,8)}, v{vIDX}")
        aread(6, AK+4)
        D.need('sr')
        S = ST0
        M_, M2_, Z_, Z2_ = AQ, AQ+1, AQ+2, AQ+3
        A(f"v_max3_f32 v{M_}, v{S}, v{S+1}, v{S+2}")
        A(f"v_max3_f32 v{M_}, v{M_}, v{S+3}, v{S+4}")
        A(f"v_max3_f32 v{M_}, v{M_}, v{S+5}, v{S+6}")
        vv(0, RA0)
        pkadd(SM)
        A(f"v_max_f32 v{M_}, v{M_}, v{S+7}")
        A(f"v_max3_f32 v{M_}, v{M_}, v{SM}, v{SM+1}")
        A(f"v_mov_b32 v{M2_}, v{M_}")
        D.need(('a', 2))
        smf(AV, RA1, v_(2, 0))
        A(f"v_permlane16_swap_b32 v{M_}, v{M2_}")
        A(f"v_max_f32 v{M_}, v{M_}, v{M2_}")
        A(f"v_mov_b32 v{M2_}, v{M_}")
        smf(AV+4, RA1, v_(2, 1))
        wread1(o_(0, 0), RA0, 0)
        A(f"v_permlane32_swap_b32 v{M_}, v{M2_}")
        A(f"v_max_f32 v{M_}, v{M_}, v{M2_}")
        A(f"v_mul_f32 v{M_}, s{sSC}, v{M_}")
        D.need(('a', 6))
        smf(AV, AK, v_(4, 0))
        wread1(o_(0, 0), RA0, 1)
        smf(AV+4, AK, v_(4, 1)); smf(AV, AK+4, v_(6, 0)); smf(AV+4, AK+4, v_(6, 1))
        vals = [S+i for i in range(8)] + [SM, SM+1]
        for n, r in enumerate(vals):
            A(f"v_fma_f32 v{r}, v{r}, s{sSC}, -v{M_}")
        PX_ = AK; PM_ = AK+4; O0 = B0; O1 = B1; VP = MX+2
        for n, r in enumerate(vals):
            A(f"v_exp_f32 v{r}, v{r}")
        for n in range(4): A(f"v_cvt_pk_bf16_f32 v{PX_+n}, v{S+2*n}, v{S+2*n+1}")
        A(f"v_cvt_pk_bf16_f32 v{PM_}, v{SM}, v{SM+1}")
        ts(8); V.need('vx'); ts(9)
        pkadd(AV)
        A(f"v_mfma_f32_16x16x32_bf16 {v(O0,4)}, {v(KX,4)}, {v(PX_,4)}, 0")
        pkadd(AV+4)
        A(f"v_mov_b32 v{PM_+1}, 0")
        A(f"v_mfma_f32_16x16x32_bf16 {v(O1,4)}, {v(KX+4,4)}, {v(PX_,4)}, 0")
        A(f"v_cvt_pk_bf16_f32 v{VP}, v{AV}, v{AV+1}")
        A(f"v_cvt_pk_bf16_f32 v{VP+1}, v{AV+4}, v{AV+5}")
        A(f"v_mov_b32 v{PM_+2}, 0")
        A(f"v_mov_b32 v{PM_+3}, v{PM_}")
        A(f"v_mfma_f32_16x16x16_bf16 {v(O0,4)}, {v(VP,2)}, {v(PM_,2)}, {v(O0,4)}")
        A(f"v_pk_add_f32 {v(S,2)}, {v(S,2)}, {v(S+2,2)}")
        A(f"v_mfma_f32_16x16x16_bf16 {v(O1,4)}, {v(VP,2)}, {v(PM_+2,2)}, {v(O1,4)}")
        A(f"v_pk_add_f32 {v(S+4,2)}, {v(S+4,2)}, {v(S+6,2)}")
        A(f"v_pk_add_f32 {v(S,2)}, {v(S,2)}, {v(SM,2)}")
        A(f"v_pk_add_f32 {v(S,2)}, {v(S,2)}, {v(S+4,2)}")
        A(f"v_add_f32 v{Z_}, v{S}, v{S+1}")
        A(f"v_mov_b32 v{Z2_}, v{Z_}")
        A(f"""s_add_u32 s{sEX}, s{sEX}, {32*4096}
        s_cmp_eq_u32 s{sS}, 63""")
        A(f"v_permlane16_swap_b32 v{Z_}, v{Z2_}")
        A(f"v_add_f32 v{Z_}, v{Z_}, v{Z2_}")
        A(f"v_mov_b32 v{Z2_}, v{Z_}")
        A(f"s_cbranch_scc1 {L('DONE')}")
        wread1(o_(1, 0), S, 0)
        A(f"v_permlane32_swap_b32 v{Z_}, v{Z2_}")
        A(f"v_add_f32 v{Z_}, v{Z_}, v{Z2_}")
        A(f"v_rcp_f32 v{Z_}, v{Z_}")
        wread1(o_(1, 0), S, 1)
        A(f"v_mov_b32 v{Z2_}, v{Z_}")
        for r in range(0, 8, 2): A(f"v_pk_mul_f32 {v(O0+r,2)}, {v(O0+r,2)}, {v(Z_,2)}")
        for r in range(4): A(f"v_cvt_pk_bf16_f32 v{AQ+4+r}, v{O0+2*r}, v{O0+2*r+1}")
        D.op(f"ds_write_b128 v{vBF}, {v(AQ+4,4)} offset:{L_O+w*512}", 'ow')
        WA = [AK, AK+4, AV, AV+4, 28, 32, 44, 48, 24]
        zero(AK, 16)
        D.need('ow')
        ts(10); A("s_barrier"); ts(11)
        OA = AQ
        D.op(f"ds_read_b128 {v(OA,4)}, v{vAF} offset:{L_O}", 'oa0')
        D.op(f"ds_read_b128 {v(OA+4,4)}, v{vAF} offset:{L_O+1024}", 'oa1')
        zero(24, 12); zero(44, 8)
        A(f"s_add_u32 s{sT}, s{sH1S}, {4*32768}")
        def post(t, dst):
            pkadd(WA[t]); A(f"v_cvt_pk_bf16_f32 v{dst}, v{WA[t]}, v{WA[t]+1}")
        D.need('oa0')
        smf(WA[0], OA, o_(0, 0)); wread1(o_(4, 0), RA0, 0)
        smf(WA[1], OA, o_(1, 0)); wread1(o_(4, 0), RA0, 1)
        smf(WA[2], OA, o_(2, 0)); wread1(o_(5, 0), S, 0)
        smf(WA[3], OA, o_(3, 0)); wread1(o_(5, 0), S, 1)
        D.need('oa1')
        for t in range(4): smf(WA[t], OA+4, o_(t, 1))
        smf(WA[8], OA, o_(8, 0)); smf(WA[8], OA+4, o_(8, 1))
        smf(WA[4], OA+4, o_(4, 1))
        A.nop(2)
        for t in range(4): post(t, AK+t)
        V.op(f"buffer_store_dwordx4 {v(AK,4)}, v{vH1a}, {WS}, s{sH1S} offen")
        wread(o_(6, 0), AV)
        post(8, 24)
        V.op(f"buffer_store_dword v24, v{vH1b}, {WS}, s{sH1S} offen")
        smf(WA[4], OA, o_(4, 0))
        wread(o_(7, 0), AK)
        smf(WA[5], OA, o_(5, 0))
        if w < 3: D.op(f"ds_read_b128 {v(RA0,4)}, v{vL16} offset:{L_SEL}", 'sel')
        smf(WA[5], OA+4, o_(5, 1)); smf(WA[6], OA+4, o_(6, 1)); smf(WA[7], OA+4, o_(7, 1))
        smf(WA[6], OA, o_(6, 0)); smf(WA[7], OA, o_(7, 0))
        post(4, 24); post(5, 25)
        A(f"s_mov_b32 s{sRZ}, s{sH1L}")
        A.nop(1)
        post(6, 26); post(7, 27)
        V.op(f"buffer_store_dwordx4 {v(24,4)}, v{vH1a}, {WS}, s{sT} offen")
        ts(12)
        if w < 3:
            PL = [AQ, AQ+4, AK, AK+4]; RD = RA1
            if w == 2: A(f"s_cmp_eq_u32 s{sRed}, 0\n s_cbranch_scc1 {L('NORED')}")
            A(f"""s_add_u32 s{sT}, s{sM2N}, s{sU7}
            s_add_u32 s{sT2}, s{sH1L}, {w*32*4096}
            s_mov_b32 s{sC}, {SPIN}""")
            delay(common.D1[w])
            A.label(L('POLL1'))
            for q in range(4):
                A(f"buffer_load_dwordx4 {v(PL[q],4)}, v{vL16}, {WS}, s{sT2} offen offset:{q*1024} sc1")
            bits(vPub, [(8, 2, 5), (4, 3, 2)], src=vL16, tmp=vDM)
            A(f"""s_sub_u32 s{sC}, s{sC}, 1
            s_cmp_eq_u32 s{sC}, 0
            s_cbranch_scc1 L_T_TO1
            s_waitcnt lgkmcnt(0)""")
            for q in range(4):
                A(f"s_waitcnt vmcnt({3-q})")
                A(f"v_mfma_f32_16x16x32_bf16 {v(RD,4)}, {v(RA0,4)}, {v(PL[q],4)}, {'0' if q == 0 else v(RD,4)}")
            A.nop(8)
            A(f"""v_add_f32_dpp v{RD+2}, v{RD}, v{RD} row_ror:8 row_mask:0xf bank_mask:0xf
            v_add_f32_dpp v{RD+3}, v{RD+1}, v{RD+1} row_ror:8 row_mask:0xf bank_mask:0xf
            v_cmp_u_f32 vcc, v{RD+2}, v{RD+3}
            v_cvt_pk_bf16_f32 v{RD}, v{RD+2}, v{RD+3}
            s_cbranch_vccnz {L('POLL1')}
            s_mov_b64 exec, {MSK}
            buffer_store_dword v{RD}, v{vPub}, {WS}, s{sT} offen
            s_mov_b64 exec, -1""")
            if w == 2:
                A(f"s_branch {L('RED2')}")
                A.label(L('NORED'))
                delay(common.D2N)
                A.label(L('RED2'))
        else:
            delay(common.D2N)
        ts(13)
        A(f"""s_xor_b32 s{sH1S}, s{sH1S}, 0x80000
        s_xor_b32 s{sH1L}, s{sH1L}, 0x80000
        s_mov_b32 s{sT}, s{sM2P}
        s_mov_b32 s{sM2P}, s{sM2R}
        s_mov_b32 s{sM2R}, s{sM2N}
        s_mov_b32 s{sM2N}, s{sT}
        s_add_u32 s{sS}, s{sS}, 1
        s_add_u32 s{sKV}, s{sKV}, {32*8192}""")
        D.reset()
        prefetch_q()
        zero(AQ, 16)
        ts(14)
        tsdump()
        A(f"s_branch {L('LOOP')}")
        A.label(L('DONE'))
        A(f"""buffer_store_dwordx4 {v(MX,4)}, v{vL16}, {WS}, s{sEX} offen offset:{w*1024} sc1
        s_waitcnt vmcnt(0)
        v_mov_b32 v{vDM}, 64
        s_mov_b64 exec, 1
        buffer_store_dword v{vDM}, v{vL16}, {WS}, s{sFT} offen sc1
        s_mov_b64 exec, -1""")
        stamp(A, 3, 24)
        A("s_endpgm")
    for w in range(4): gen_loop(w)
    A.label('L_T_TO1'); A(f"s_mov_b32 s{sERR}, 0x04\n s_branch L_ABORT")
    A.label('L_T_TO2'); A(f"s_mov_b32 s{sERR}, 0x05\n s_branch L_ABORT")
```

```python
import sys
from common import *
import common
from role_p import gen_P, arrive_init
from role_pro import gen_mod_ln1

HDR = open('cdna_kernels/%s.s.ref' % KNAME).read().split('; Override launch')[0]

def main(out, roles):
    A = Asm()
    A(f"""s_cmp_ge_u32 s2, 256
    s_cbranch_scc1 L_END
    s_load_dwordx16 s[4:19], s[0:1], 0
    s_load_dwordx16 s[20:35], s[0:1], 64
    s_getreg_b32 s{sXCC}, hwreg(HW_REG_XCC_ID)
    v_lshrrev_b32 v1, 6, v0
    s_and_b32 s{sXCC}, s{sXCC}, 7
    v_readfirstlane_b32 s{sW}, v1
    v_and_b32 v0, 63, v0
    s_mov_b32 s{sERR}, 0
    s_mov_b32 s{sCU}, 0
    s_waitcnt lgkmcnt(0)""")
    mk_srd(A, SRD_WS, PWS, WS_SIZE); mk_srd(A, SRD_DBG, PDBG, 256)
    A(f"""v_mov_b32 v3, 0
    s_cmp_lg_u32 s{sW}, 0
    s_cbranch_scc1 L_TK
    s_lshl_b32 s70, s{sXCC}, 2
    v_mov_b32 v1, 1
    v_mov_b32 v2, s70
    s_mov_b64 exec, 1
    buffer_atomic_add v1, v2, {DBG}, 0 offen sc0
    s_waitcnt vmcnt(0)
    ds_write_b32 v3, v1
    s_mov_b64 exec, -1
    s_waitcnt lgkmcnt(0)""")
    A.label('L_TK')
    A(f"""s_barrier
    ds_read_b32 v1, v3
    s_waitcnt lgkmcnt(0)
    v_readfirstlane_b32 s{sCU}, v1
    s_barrier
    s_cmp_ge_u32 s{sCU}, 32
    s_cbranch_scc1 L_END""")
    stamp(A, 0, 1)
    A(f"""s_cmp_eq_u32 s{sXCC}, 0
    s_cbranch_scc1 L_J_T
    s_sub_u32 s{sSUB}, s{sXCC}, 1
    s_cmp_lt_u32 s{sXCC}, 3
    s_cbranch_scc1 L_J_P
    s_sub_u32 s{sSUB}, s{sXCC}, 3
    s_cmp_lt_u32 s{sXCC}, 5
    s_cbranch_scc1 L_J_A
    s_sub_u32 s{sSUB}, s{sXCC}, 5
    s_branch L_ROLE_F""")
    for r in 'TPA':
        A.label(f'L_J_{r}'); A(f"s_branch L_ROLE_{r}")
    A.label('L_ABORT')
    A(f"""s_mov_b64 exec, 1
    v_mov_b32 v1, s{sERR}
    s_lshl_b32 s70, s{sXCC}, 2
    v_mov_b32 v2, s70
    buffer_store_dword v1, v2, {DBG}, 0 offen offset:{D_ERR}
    s_waitcnt vmcnt(0)""")
    A.label('L_END')
    A("s_endpgm")
    def stub(r):
        A.label(f'L_ROLE_{r}')
        A("v_mov_b32 v2, 0")
        arrive_init(A, 1, 2)
        A("s_endpgm")
    gens = {}
    gens['P'] = gen_P
    try:
        from role_t import gen_T; gens['T'] = gen_T
    except ImportError: pass
    try:
        from role_a import gen_A; gens['A'] = gen_A
    except ImportError:
        def ga(A):
            A.label('L_ROLE_A'); A("v_mov_b32 v2, 0"); arrive_init(A, 1, 2); gen_mod_ln1(A); A("s_endpgm")
        gens['A'] = ga
    try:
        from role_f import gen_F; gens['F'] = gen_F
    except ImportError: pass
    for r in 'TPAF':
        if r in roles and r in gens: gens[r](A)
        else: stub(r)
    bad = check_hazards(A.lines)
    print('hazards:', bad, 'lines:', len(A.lines), file=sys.stderr)
    txt = HDR + f"""; @launch grid=(256,1,1) block=(256,1,1) lds=163840
.amdgcn_target "amdgcn-amd-amdhsa--gfx950"
.text
.globl {KNAME}_kernel
.p2align 8
.type {KNAME}_kernel,@function
{KNAME}_kernel:
""" + A.text() + f""".section .rodata,"a"
.p2align 6
.amdhsa_kernel {KNAME}_kernel
  .amdhsa_next_free_vgpr 512
  .amdhsa_next_free_sgpr 102
  .amdhsa_accum_offset 256
  .amdhsa_group_segment_fixed_size 0
  .amdhsa_kernarg_size 128
  .amdhsa_user_sgpr_count 2
  .amdhsa_user_sgpr_kernarg_segment_ptr 1
  .amdhsa_system_sgpr_workgroup_id_x 1
  .amdhsa_float_denorm_mode_32 3
.end_amdhsa_kernel
"""
    open(out, 'w').write(txt)
    return bad

if __name__ == '__main__':
    out = sys.argv[1] if len(sys.argv) > 1 else 'k.s'
    roles = sys.argv[2] if len(sys.argv) > 2 else 'TPAF'
    if len(sys.argv) > 3 and sys.argv[3] == 'final': common.DEV = False
    for kv in sys.argv[3:]:
        if '=' in kv:
            k_, v_ = kv.split('='); setattr(common, k_, eval(v_))
    main(out, roles)
```

```python
from asmlib import *
KNAME = 'adaLN_cond__memory_aug_recurrent_mem_tr__swiglu_ffn__prompt'
FLG = 0x0000000
MOD = 0x0010000
M2  = 0x0020000
P1  = 0x1E00000
STAMP = 0x00E0000
H1  = 0x0100000
H2  = 0x0400000
X1  = 0x0700000
PA  = 0x0A00000
PF  = 0x0F00000
KM  = 0x1600000
VM  = 0x1A00000
QB  = 0x2000000
KB  = 0x3000000
VB  = 0x4000000
WS_SIZE = 0x10000000
FP  = FLG + 0x0000
FT  = FLG + 0x2000
FA  = FLG + 0x3000
FH2 = FLG + 0x3200
FF  = FLG + 0x3400
D_INIT = 51*4
D_MOD  = 18*4
D_H1   = 1*4
D_ERR  = 56*4
N_INIT = 224 + 72
PX, PMEM0, PWQ, PWK, PWV, PWO, PSL, PBX, PG, PU, PD, PC, PWM, POUT, PDBG, PWS = [4+2*i for i in range(16)]
SRD_WS = 36; SRD_DBG = 40
SR0, SR1, SR2, SR3, SR4 = 44, 48, 52, 56, 60
sW, sCU, sXCC, sSUB, sERR = 64, 65, 66, 67, 68
WS = s(SRD_WS, 4); DBG = s(SRD_DBG, 4)
SPIN = 1 << 15

def mk_srd(A, dst, ptr, size):
    A(f"""s_mov_b32 s{dst}, s{ptr}
    s_and_b32 s{dst+1}, s{ptr+1}, 0xffff
    s_mov_b32 s{dst+2}, {size}
    s_mov_b32 s{dst+3}, 0x20000""")

def wait_counter(A, off, target, vt, vz, sc, err, srd=DBG, cmp='ge', sleep=2):
    l0 = A.newlab('WC'); l1 = A.newlab('WCD')
    A(f"s_mov_b32 s{sc}, {SPIN}")
    A.label(l0)
    A(f"""buffer_load_dword v{vt}, v{vz}, {srd}, 0 offen offset:{off} sc1
    s_waitcnt vmcnt(0)
    v_cmp_gt_u32 vcc, {target}, v{vt}
    s_cbranch_vccz {l1}
    s_sleep {sleep}
    s_sub_u32 s{sc}, s{sc}, 1
    s_cmp_lg_u32 s{sc}, 0
    s_cbranch_scc1 {l0}
    s_mov_b32 s{sERR}, {err}
    s_branch L_ABORT""")
    A.label(l1)

def rnd2(A, lo, hi, a0, a1, t):
    A(f"""v_cvt_pk_bf16_f32 v{t}, v{a0}, v{a1}
    v_lshlrev_b32 v{lo}, 16, v{t}
    v_and_b32 v{hi}, 0xffff0000, v{t}""")
def rnd1(A, d, a0):
    A(f"""v_cvt_pk_bf16_f32 v{d}, v{a0}, v{a0}
    v_lshlrev_b32 v{d}, 16, v{d}""")

def load_frags(A, jobs, nslots, slot_bytes, sLds, sT, sc='', hooks={}):
    N = len(jobs)
    issued = []
    cnt = [0]
    def issue(i):
        j = jobs[i]
        sl = j.get('slot', i % nslots)
        for (srd, voff, sbase, const, ldsoff) in j['dma']:
            A(f"s_add_u32 m0, s{sLds}, {sl*slot_bytes+ldsoff}")
            A(f"s_add_u32 s{sT}, s{sbase}, {const}")
            A(f"buffer_load_dwordx4 v{voff}, {s(srd,4)}, s{sT} offen {sc} lds")
            cnt[0] += 1
        issued.append(cnt[0])
    for i in range(min(nslots, N)): issue(i)
    for i in range(N):
        j = jobs[i]
        sl = j.get('slot', i % nslots)
        out = cnt[0] - issued[i]
        assert out <= 63
        A(f"s_waitcnt vmcnt({out})")
        if i in hooks: hooks[i]()
        for (dst, vaddr, imm) in j['reads']:
            off = sl*slot_bytes + imm
            assert off < 65536
            A(f"ds_read_b64_tr_b16 {dst}, v{vaddr} offset:{off}")
        if j.get('post'):
            A("s_waitcnt lgkmcnt(0)")
            for ln in j['post']: A(ln(sl*slot_bytes) if callable(ln) else ln)
        if i + nslots < N:
            A("s_waitcnt lgkmcnt(0)")
            issue(i + nslots)
    A("s_waitcnt lgkmcnt(0)")

class WRegs:
    def __init__(self, vbase, abase=0):
        self.vbase = vbase; self.abase = abase
    def __call__(self, i, c):
        na = 256 - self.abase
        if i + c <= na: return a(self.abase + i, c)
        assert i >= na, (i, c)
        r = self.vbase + (i - na)
        assert r + c <= 256, (i, c)
        return v(r, c)

DEV = True
SER = False
PSLEEP = 4
XMAP = [0,3,1,5,2,6,4,7]
PST = False
TLOAD = False
FOFF = False
WARM = 0
FDELAY = 2
WST = [0,1,2,3]
FINE = None
NOX = False
DB0 = [24,16,28,32]
NOEX = False
DEX = 0
B1B = 12
AOFF = False
NP2 = 1
G2 = 16
NP1 = 1
G1 = 2
E1 = None
D2R = 0
EXPOS = 'O'
FLPOS = 'S'
RSTPOS = 'S'
TSR = False
P2B = -1
C2B = 8
D1 = [0,48,0]
D2N = 4
XONLY = False
PFSH = 3
H1DELAY = [0,0,0]
B0 = 1
TS = True
STAMP2 = 0x00D0000
def stamp(A, idx, vt=None):
    if not DEV: return
    A(f"""s_memrealtime s[98:99]
    s_memtime s[100:101]
    s_lshl_b32 s96, s{sXCC}, 5
    s_add_u32 s96, s96, s{sCU}
    s_lshl_b32 s96, s96, 2
    s_add_u32 s96, s96, s{sW}
    s_lshl_b32 s96, s96, 7
    s_add_u32 s96, s96, {STAMP + idx*4}
    s_waitcnt lgkmcnt(0)
    v_mov_b32 v{vt}, s98
    v_mov_b32 v{vt+1}, 0
    buffer_store_dword v{vt}, v{vt+1}, {WS}, s96 offen
    s_nop 1
    v_mov_b32 v{vt}, s100
    buffer_store_dword v{vt}, v{vt+1}, {WS}, s96 offen offset:64""")

class Cnt:
    def __init__(self, A, name, mx):
        self.A = A; self.name = name; self.mx = mx
        self.q = []
    def op(self, txt, tag=None):
        self.A(txt); self.q.append(tag)
    def need(self, *tags):
        idx = -1
        for i, t in enumerate(self.q):
            if t in tags: idx = i
        if idx < 0: return
        n = len(self.q) - 1 - idx
        n = min(n, self.mx)
        self.A(f"s_waitcnt {self.name}({n})")
        self.q = self.q[len(self.q) - n:] if n else []
    def drain(self):
        if self.q:
            self.A(f"s_waitcnt {self.name}(0)")
        self.q = []
    def reset(self): self.q = []

def load_coop(A, rounds, nslots, slot_bytes, sLds, sT, hooks={}):
    N = len(rounds); issued = []; cnt = [0]
    def issue(i):
        sl = i % nslots
        for (srd, voff, sbase, const, ldsoff) in rounds[i]['dma']:
            A(f"s_add_u32 m0, s{sLds}, {sl*slot_bytes+ldsoff}")
            A(f"s_add_u32 s{sT}, s{sbase}, {const}")
            A(f"buffer_load_dwordx4 v{voff}, {s(srd,4)}, s{sT} offen lds")
            cnt[0] += 1
        issued.append(cnt[0])
    for i in range(min(nslots, N)): issue(i)
    for i in range(N):
        out = cnt[0] - issued[i]; assert out <= 63
        A(f"s_waitcnt vmcnt({out}) lgkmcnt(0)\n s_barrier")
        if i in hooks: hooks[i]()
        if i >= 1 and i - 1 + nslots < N: issue(i - 1 + nslots)
        if i >= 1 and rounds[i-1].get('post'): rounds[i-1]['post'](((i-1) % nslots)*slot_bytes)
        so = (i % nslots)*slot_bytes
        r = rounds[i]['reads']
        if callable(r): r(so)
        else:
            for (dst, vaddr, imm) in r:
                assert so + imm < 65536
                A(f"ds_read_b64_tr_b16 {dst}, v{vaddr} offset:{so+imm}")
    A("s_waitcnt lgkmcnt(0)\n s_barrier")
    if rounds[N-1].get('post'): rounds[N-1]['post'](((N-1) % nslots)*slot_bytes)
```

```python
from common import *
import common
from role_p import arrive_init
from role_pro import gen_mod_ln1, ln_core

SCALE = 0x3db504f3
LOG2E = 0x3fb8aa3b

def mkbits(A, lane, tmp):
    def bits(dst, spec, acc=False):
        first = not acc
        for (lo, n, sh) in spec:
            A(f"v_bfe_u32 v{tmp}, v{lane}, {lo}, {n}")
            if first: A(f"v_lshlrev_b32 v{dst}, {sh}, v{tmp}"); first = False
            else: A(f"v_lshl_add_u32 v{dst}, v{tmp}, {sh}, v{dst}")
    return bits

def red64(A, x, t):
    for m in ("quad_perm:[1,0,3,2]", "quad_perm:[2,3,0,1]", "row_half_mirror", "row_mirror"):
        A.nop(2)
        A(f"v_add_f32_dpp v{x}, v{x}, v{x} {m} row_mask:0xf bank_mask:0xf")
    for p in ("16", "32"):
        A(f"v_mov_b32 v{t}, v{x}")
        A.nop(2)
        A(f"v_permlane{p}_swap_b32 v{x}, v{t}")
        A(f"v_add_f32 v{x}, v{x}, v{t}")

def poll_words(A, vdst, vaddr, soff, imm, sneed, mask, sC, err, sknown=None):
    l0 = A.newlab('PW'); l1 = A.newlab('PWD')
    if mask == 'lo32': A("s_mov_b32 exec_hi, 0")
    else: A(f"s_mov_b64 exec, {mask}")
    if sknown:
        A(f"v_cmp_gt_u32 vcc, s{sneed}, v{vdst}\n s_cbranch_vccz {l1}")
    A(f"s_mov_b32 s{sC}, {SPIN}")
    A.label(l0)
    A(f"""buffer_load_dword v{vdst}, v{vaddr}, {WS}, s{soff} offen offset:{imm} sc1
    s_waitcnt vmcnt(0)
    v_cmp_gt_u32 vcc, s{sneed}, v{vdst}
    s_cbranch_vccz {l1}
    s_sleep {common.PSLEEP}
    s_sub_u32 s{sC}, s{sC}, 1
    s_cmp_lg_u32 s{sC}, 0
    s_cbranch_scc1 {l0}
    s_mov_b32 s{sERR}, {err}
    s_branch L_ABORT""")
    A.label(l1)
    A("s_mov_b64 exec, -1")

def gemm2_store(A, ACC, vSa, vSb, sbase, sT, TMP):
    for tt in range(2):
        for r in range(4):
            t = TMP + 8*((tt*4 + r) & 1)
            for y in range(4):
                A(f"v_cvt_pk_bf16_f32 v{t+y}, v{ACC[tt][2*y]+r}, v{ACC[tt][2*y+1]+r}")
            A(f"v_cvt_pk_bf16_f32 v{t+4}, v{ACC[tt][8]+r}, v{ACC[tt][8]+r}")
            A(f"s_add_u32 s{sT}, s{sbase}, {(16*tt + r)*36864}")
            A(f"buffer_store_dwordx4 {v(t,4)}, v{vSa}, {WS}, s{sT} offen")
            A(f"buffer_store_short v{t+4}, v{vSb}, {WS}, s{sT} offen")

def reduce_row(A, PL, SEL, RD, vRa, vRb, sbase, sT, vWa, vWb, L_R, L_E, sTagN, sC, err, mid=None):
    l0 = A.newlab('RR'); l1 = A.newlab('RRC'); l2 = A.newlab('RRO')
    def loads():
        for i in range(8):
            A(f"s_add_u32 s{sT}, s{sbase}, {i*4*1152}")
            A(f"buffer_load_dwordx4 {v(PL+4*i,4)}, v{vRa}, {WS}, s{sT} offen sc1")
        A(f"buffer_load_dwordx4 {v(PL+32,4)}, v{vRb}, {WS}, s{sbase} offen sc1")
    loads()
    A(f"s_mov_b32 s{sC}, {SPIN}")
    if mid: mid()
    A(f"s_branch {l1}")
    A.label(l0)
    A(f"""s_sub_u32 s{sC}, s{sC}, 1
    s_cmp_lg_u32 s{sC}, 0
    s_cbranch_scc1 {l2}
    s_mov_b32 s{sERR}, {err}
    s_branch L_ABORT""")
    A.label(l2)
    loads()
    A.label(l1)
    G = RD + 8
    for i in range(8):
        A(f"s_waitcnt vmcnt({8-i})")
        A(f"v_mfma_f32_16x16x32_bf16 {v(RD,4)}, {v(SEL,4)}, {v(PL+4*i,4)}, {'0' if i == 0 else v(RD,4)}")
        if i == 0: A(f"v_xor_b32 v{G}, s{sTagN}, v{PL}")
        else: A(f"v_bitop3_b32 v{G}, v{G}, v{PL+4*i}, s{sTagN} bitop3:0xf6")
    A("s_waitcnt vmcnt(0)")
    A(f"v_mfma_f32_16x16x32_bf16 {v(RD+4,4)}, {v(SEL,4)}, {v(PL+32,4)}, 0")
    A(f"""v_bitop3_b32 v{G}, v{G}, v{PL+32}, s{sTagN} bitop3:0xf6
    v_and_b32 v{G}, 1, v{G}
    v_cmp_ne_u32 vcc, 0, v{G}
    s_cbranch_vccnz {l0}""")
    A.nop(1)
    A(f"ds_write2_b32 v{vWa}, v{RD}, v{RD+1} offset0:0 offset1:16")
    A.nop(2)
    A(f"ds_write_b64 v{vWb}, {v(RD+4,2)}")
    A("s_waitcnt lgkmcnt(0)\n s_barrier")

def init_rows(A, vL16, tmp, sbase, sT):
    for q in range(4): A(f"v_mov_b32 v{tmp+q}, -1")
    A(f"s_mul_i32 s{sT}, s{sW}, 9216\n s_add_u32 s{sT}, s{sT}, s{sbase}")
    for b in range(2):
        for i in range(9):
            A(f"buffer_store_dwordx4 {v(tmp,4)}, v{vL16}, {WS}, s{sT} offen offset:{(i%3)*1024}")
            if i % 3 == 2: A(f"s_add_u32 s{sT}, s{sT}, {3072 if i < 8 else 0x120000 - 6144}")

def st_row(ACC, tt, r, tmp, vSa, vSb, sbase, sT, sTag):
    out = [f"v_cvt_pk_bf16_f32 v{tmp+y}, v{ACC[tt][2*y]+r}, v{ACC[tt][2*y+1]+r}" for y in range(4)]
    out += [f"v_cvt_pk_bf16_f32 v{tmp+4}, v{ACC[tt][8]+r}, v{ACC[tt][8]+r}",
            f"v_and_or_b32 v{tmp}, v{tmp}, -2, s{sTag}",
            f"v_and_or_b32 v{tmp+4}, v{tmp+4}, -2, s{sTag}",
            f"s_add_u32 s{sT}, s{sbase}, {(16*tt + r)*36864}",
            f"buffer_store_dwordx4 {v(tmp,4)}, v{vSa}, {WS}, s{sT} offen",
            f"buffer_store_short v{tmp+4}, v{vSb}, {WS}, s{sT} offen"]
    return out

def ln9(A, Y, T):
    S, Q, M, Cc, U = T, T+1, T+2, T+4, T+6
    A(f"s_nop 0\n v_readfirstlane_b32 s97, v{Y}")
    A.nop(2)
    for i in range(9):
        A(f"v_subrev_f32 v{U}, s97, v{Y+i}")
        if i == 0: A(f"v_mov_b32 v{S}, v{U}\n v_mul_f32 v{Q}, v{U}, v{U}")
        else: A(f"v_add_f32 v{S}, v{S}, v{U}\n v_fmac_f32 v{Q}, v{U}, v{U}")
    A.nop(1)
    for m in ("quad_perm:[1,0,3,2]", "quad_perm:[2,3,0,1]", "row_half_mirror", "row_mirror"):
        A(f"v_add_f32_dpp v{S}, v{S}, v{S} {m} row_mask:0xf bank_mask:0xf")
        A(f"v_add_f32_dpp v{Q}, v{Q}, v{Q} {m} row_mask:0xf bank_mask:0xf")
        A.nop(1)
    for p_ in ("16", "32"):
        A(f"v_mov_b64 {v(U,2)}, {v(S,2)}")
        A.nop(2)
        A(f"v_permlane{p_}_swap_b32 v{S}, v{U}\n v_permlane{p_}_swap_b32 v{Q}, v{U+1}")
        A(f"v_pk_add_f32 {v(S,2)}, {v(S,2)}, {v(U,2)}")
    A(f"""v_mul_f32 v{S}, 0x3ae38e39, v{S}
    v_mul_f32 v{Q}, 0x3ae38e39, v{Q}
    v_fma_f32 v{Q}, -v{S}, v{S}, v{Q}
    v_max_f32 v{Q}, 0, v{Q}
    v_add_f32 v{M}, s97, v{S}""")
    rnd2(A, M, Q, M, Q, U)
    A(f"v_add_f32 v{Q}, 0x3727c5ac, v{Q}")
    rnd1(A, Q, Q)
    A(f"v_sqrt_f32 v{Q}, v{Q}")
    for i in range(0, 8, 2): A(f"v_pk_add_f32 {v(Y+i,2)}, {v(Y+i,2)}, {v(M,2)} op_sel_hi:[1,0] neg_lo:[0,1] neg_hi:[0,1]")
    A(f"v_sub_f32 v{Y+8}, v{Y+8}, v{M}")
    rnd1(A, Q, Q)
    A(f"v_rcp_f32 v{Cc}, v{Q}")
    rnd9(A, Y, U)
    op9(A, 'mul', Y, Cc, bc=True)
    rnd9(A, Y, U)

def op9(A, op, Y, B, bc=False):
    for i in range(0, 8, 2):
        A(f"v_pk_{op}_f32 {v(Y+i,2)}, {v(Y+i,2)}, {v(B if bc else B+i,2)}" + (" op_sel_hi:[1,0]" if bc else ""))
    A(f"v_{op}_f32 v{Y+8}, v{Y+8}, v{B if bc else B+8}")

def reduce_setup(A, bits, lane, t0, t1, SEL, vSa, vSb, vRa, vRb, vWa, vWb, vLa, vLb, vGa, vGb, L_R, L_E, sT):
    A(f"""v_and_b32 v{t0}, 1, v{lane}
    v_lshlrev_b32 v{t0}, 4, v{t0}
    v_mov_b32 v{t1}, 0x3f80
    v_lshlrev_b32 v{t1}, v{t0}, v{t1}
    v_bfe_u32 v{t0}, v{lane}, 2, 2""")
    for q in range(4):
        A(f"""v_cmp_eq_u32 vcc, {q}, v{t0}
        s_nop 1
        v_cndmask_b32 v{SEL+q}, 0, v{t1}, vcc""")
    bits(t1, [(4, 2, 0)])
    A(f"s_mov_b32 s{sT}, {4*36864}\n v_mul_lo_u32 v{vSa}, s{sT}, v{t1}\n v_mov_b32 v{vSb}, v{vSa}")
    bits(vSa, [(0, 4, 4)], acc=True); bits(vSb, [(0, 4, 1)], acc=True)
    A(f"""s_lshl_b32 s{sT}, s{sW}, 8
    v_add_u32 v{vSa}, s{sT}, v{vSa}
    s_lshl_b32 s{sT}, s{sW}, 5
    s_add_u32 s{sT}, s{sT}, 1024
    v_add_u32 v{vSb}, s{sT}, v{vSb}""")
    bits(t1, [(4, 2, 0)])
    A(f"v_mul_u32_u24 v{vRa}, 1152, v{t1}")
    bits(vRa, [(0, 4, 4)], acc=True)
    A(f"s_lshl_b32 s{sT}, s{sW}, 8\n v_add_u32 v{vRa}, s{sT}, v{vRa}")
    bits(t1, [(3, 3, 0)])
    A(f"v_mul_u32_u24 v{vRb}, 1152, v{t1}")
    bits(vRb, [(0, 3, 4)], acc=True)
    A(f"s_mul_i32 s{sT}, s{sW}, {8*1152}\n s_add_u32 s{sT}, s{sT}, 1024\n v_add_u32 v{vRb}, s{sT}, v{vRb}")
    bits(vWa, [(4, 2, 7), (0, 4, 2)])
    A(f"s_lshl_b32 s{sT}, s{sW}, 9\n s_add_u32 s{sT}, s{sT}, {L_R}\n v_add_u32 v{vWa}, s{sT}, v{vWa}")
    bits(vWb, [(3, 1, 8), (0, 3, 5), (4, 2, 3)])
    A(f"s_lshl_b32 s{sT}, s{sW}, 9\n s_add_u32 s{sT}, s{sT}, {L_E}\n v_add_u32 v{vWb}, s{sT}, v{vWb}")
    A(f"v_lshlrev_b32 v{vLa}, 5, v{lane}\n v_lshlrev_b32 v{vLb}, 2, v{lane}")
    bits(t1, [(4, 2, 0)])
    A(f"v_mul_u32_u24 v{vGa}, 288, v{t1}\n v_add_u32 v{vGb}, 256, v{vGa}")
    bits(vGa, [(0, 4, 4)], acc=True); bits(vGb, [(0, 4, 1)], acc=True)

def load9(A, dst, tmp, vGa, vGb, srd, soff, imm, sc='sc1'):
    A(f"buffer_load_dwordx4 {v(tmp,4)}, v{vGa}, {srd}, {soff} offen offset:{imm} {sc}")
    A(f"buffer_load_ushort v{tmp+4}, v{vGb}, {srd}, {soff} offen offset:{imm} {sc}")
def unpack9(A, dst, tmp):
    for d in range(4):
        A(f"v_lshlrev_b32 v{dst+2*d}, 16, v{tmp+d}\n v_and_b32 v{dst+2*d+1}, 0xffff0000, v{tmp+d}")
    A(f"v_lshlrev_b32 v{dst+8}, 16, v{tmp+4}")
def rnd9(A, r, t):
    for d in range(4): rnd2(A, r+2*d, r+2*d+1, r+2*d, r+2*d+1, t)
    rnd1(A, r+8, r+8)
def store9(A, r, tmp, vGa, vGb, srd, soff, sc='sc1'):
    for d in range(4): A(f"v_cvt_pk_bf16_f32 v{tmp+d}, v{r+2*d}, v{r+2*d+1}")
    A(f"v_cvt_pk_bf16_f32 v{tmp+4}, v{r+8}, v{r+8}")
    A(f"buffer_store_dwordx4 {v(tmp,4)}, v{vGa}, {srd}, {soff} offen {sc}")
    A(f"buffer_store_short v{tmp+4}, v{vGb}, {srd}, {soff} offen {sc}")
def read_sums(A, Y, E, vLa, vLb, L_R, L_E):
    A(f"ds_read_b128 {v(Y,4)}, v{vLa} offset:{L_R}\n ds_read_b128 {v(Y+4,4)}, v{vLa} offset:{L_R+16}")
    for i in range(8): A(f"ds_read_b32 v{E+i}, v{vLb} offset:{L_E+256*i}")
    A("s_waitcnt lgkmcnt(0)")
    for st in (4, 2):
        for i in range(st): A(f"v_add_f32 v{E+i}, v{E+i}, v{E+i+st}")
    A(f"v_add_f32 v{Y+8}, v{E}, v{E+1}")

def gen_A(A):
    A.label('L_ROLE_A')
    def ta(i):
        if common.DEV and common.TS:
            l = A.newlab('TA')
            A(f"s_cmp_lg_u32 s{sN}, 20\n s_cbranch_scc1 {l}")
            stamp(A, 4+i, 254)
            A.label(l)
    sT, sC, sN, sLds, sWo, sQKV, sEX, sFP, sFTo, sPA, sPR, sFA, sFH, sRow, sNeed, sT2 = range(74, 90)
    lane, t0, t1, vZ = 0, 1, 2, 3
    A(f"""v_mov_b32 v{vZ}, 0
    s_lshl_b32 s{sT}, s{sSUB}, 7
    s_lshl_b32 s{sT2}, s{sCU}, 2
    s_add_u32 s{sFA}, s{sT}, {FA}
    s_add_u32 s{sT}, s{sT}, s{sT2}
    s_add_u32 s{sFH}, s{sT}, {FH2}
    s_add_u32 s{sT}, s{sT}, {FA}
    buffer_store_dword v{vZ}, v{vZ}, {WS}, s{sT} offen
    buffer_store_dword v{vZ}, v{vZ}, {WS}, s{sFH} offen sc1""")
    A(f"""s_mul_i32 s{sT}, s{sSUB}, 0x240000
    s_mul_i32 s{sPR}, s{sCU}, 36864
    s_add_u32 s{sPR}, s{sPR}, s{sT}
    s_add_u32 s{sPR}, s{sPR}, {PA}""")
    gen_mod_ln1(A)
    A(f"v_lshlrev_b32 v4, 4, v0")
    init_rows(A, 4, 8, sPR, sT)
    A("s_waitcnt vmcnt(0)\n s_barrier")
    A(f"v_mov_b32 v{vZ}, 0")
    arrive_init(A, t0, vZ)
    stamp(A, 1, 2)
    if common.AOFF: A("s_endpgm")
    A("s_barrier")
    bits = mkbits(A, lane, t0)
    mk_srd(A, SR3, PWO, 4096*1152)
    vDm, vD8, vTr, vL16, vFP, vFT, vFA, vL4, vKW, vVW, vVR, vKR, vOW, vOR = range(4, 18)
    vSa, vSb, vRa, vRb, vWa, vWb, vLa, vLb, vGa, vGb = range(18, 28)
    SEL = 28; GA = 32; CB = 42; SBv = 52
    vTok = 61
    QF = 64; KF = 96; VF = 128; SX = 136; SMm = 152; OO = 168; KMF = 184; TM = 216
    L_KM = 0; L_VM = 2048; L_OO = 4096; L_R = 12288; L_E = 14336; L_ST = 16384; L_RDY = 0xF000
    A(f"v_mov_b32 v{vZ}, 0")
    bits(t1, [(2, 4, 0)])
    A(f"v_mul_u32_u24 v{vDm}, 1152, v{t1}\n v_mov_b32 v{vD8}, v{vDm}")
    bits(vDm, [(0, 2, 4)], acc=True); bits(vD8, [(0, 1, 4)], acc=True)
    A(f"""v_bfe_u32 v{t0}, v{lane}, 1, 1
    v_mul_u32_u24 v{t0}, {32*1152}, v{t0}
    v_add_u32 v{vD8}, v{vD8}, v{t0}
    s_mul_i32 s{sLds}, s{sW}, 36864
    s_add_u32 s{sLds}, s{sLds}, {L_ST}
    s_mul_i32 s{sWo}, s{sCU}, {128*1152}
    s_mul_i32 s{sT}, s{sW}, 288
    s_add_u32 s{sWo}, s{sWo}, s{sT}""")
    bits(vTr, [(5, 1, 10), (4, 1, 8), (2, 2, 6), (0, 2, 3)])
    A(f"v_add_u32 v{vTr}, s{sLds}, v{vTr}")
    WF = lambda t, kk: (t*4 + kk)*4
    jobs = []
    for kk in range(4):
        for y in range(4):
            jobs.append(dict(dma=[(SR3, vDm, sWo, (32*kk + 16*i)*1152 + y*64, i*1024) for i in range(2)],
                             reads=[(a(WF(2*y+u, kk) + 2*yy, 2), vTr, yy*512 + u*32) for u in range(2) for yy in range(2)]))
    for k2 in range(2):
        jobs.append(dict(dma=[(SR3, vD8, sWo, (64*k2 + 16*i)*1152 + 256, i*1024) for i in range(2)],
                         reads=[(a(WF(8, 2*k2+u) + 2*yy, 2), vTr, yy*512 + u*32) for u in range(2) for yy in range(2)]))
    load_frags(A, jobs, 18, 2048, sLds, sT)
    reduce_setup(A, bits, lane, t0, t1, SEL, vSa, vSb, vRa, vRb, vWa, vWb, vLa, vLb, vGa, vGb, L_R, L_E, sT)
    A(f"s_mov_b32 s{sT}, {MOD+2*1152}")
    load9(A, GA, TM, vGa, vGb, WS, f"s{sT}", 0); load9(A, SBv, TM+8, vGa, vGb, WS, f"s{sT}", 1152); load9(A, CB, TM+16, vGa, vGb, WS, f"s{sT}", 2304)
    A("s_waitcnt vmcnt(0)")
    unpack9(A, GA, TM); unpack9(A, SBv, TM+8); unpack9(A, CB, TM+16)
    for i in range(9): A(f"v_add_f32 v{CB+i}, 1.0, v{CB+i}")
    rnd9(A, CB, TM)
    A(f"""v_lshlrev_b32 v{vL16}, 4, v{lane}
    v_lshlrev_b32 v{vL4}, 2, v{lane}
    v_mov_b32 v{vFP}, 0
    v_mov_b32 v{vFT}, 0""")
    bits(vKW, [(3, 1, 8), (1, 1, 7), (4, 2, 5), (0, 1, 3), (2, 1, 2)])
    A(f"s_lshl_b32 s{sT}, s{sW}, 9\n v_add_u32 v{vKW}, s{sT}, v{vKW}")
    bits(vVW, [(0, 4, 4), (4, 2, 2)])
    A(f"s_add_u32 s{sT}, s{sT}, {L_VM}\n v_add_u32 v{vVW}, s{sT}, v{vVW}")
    bits(vVR, [(0, 5, 4), (5, 1, 3)])
    A(f"v_add_u32 v{vVR}, s{sT}, v{vVR}")
    bits(vKR, [(5, 1, 7), (0, 3, 4)])
    A(f"s_lshl_b32 s{sT}, s{sW}, 11\n s_add_u32 s{sT}, s{sT}, {L_OO}\n v_add_u32 v{vOW}, s{sT}, v{vL16}")
    bits(vOR, [(4, 2, 9), (0, 4, 4)])
    A(f"""v_and_b32 v{vTok}, 31, v{lane}
    v_bfe_u32 v{t0}, v{lane}, 5, 1
    v_lshlrev_b32 v{t0}, 2, v{t0}
    v_sub_u32 v{vTok}, v{vTok}, v{t0}
    s_lshl_b32 s{sQKV}, s{sSUB}, 5
    s_add_u32 s{sQKV}, s{sQKV}, s{sCU}
    s_lshl_b32 s{sFP}, s{sQKV}, 7
    s_lshl_b32 s{sEX}, s{sQKV}, 12
    s_mul_i32 s{sRow}, s{sQKV}, 1152
    s_lshl_b32 s{sQKV}, s{sQKV}, 13
    s_lshl_b32 s{sT}, s{sW}, 10
    s_add_u32 s{sEX}, s{sEX}, s{sT}
    s_add_u32 s{sEX}, s{sEX}, {KM}
    s_lshl_b32 s{sFTo}, s{sCU}, 7
    s_add_u32 s{sFTo}, s{sFTo}, {FT}
    s_mul_i32 s{sT}, s{sSUB}, 0x240000
    s_add_u32 s{sT}, s{sT}, {PA}
    s_mul_i32 s{sPA}, s{sCU}, 1152
    s_add_u32 s{sPA}, s{sPA}, s{sT}
    s_mul_i32 s{sPR}, s{sCU}, 36864
    s_add_u32 s{sPR}, s{sPR}, s{sT}
    s_mov_b32 s{sN}, 0""")
    wait_counter(A, D_INIT, N_INIT, t0, vZ, sC, 0x31)
    A("s_barrier")
    stamp(A, 2, TM)
    MK = lambda r: s(4 + 2*r, 2)
    for r in range(16):
        A(f"v_cmp_le_i32 {MK(r)}, {(r & 3) + 8*(r >> 2)}, v{vTok}")
    vQR = vTok
    sBuf = 90
    def dma_qkv():
        A(f"s_lshl_b32 s{sT2}, s{sW}, 11\n s_add_u32 s{sC}, s{sBuf}, s{sT2}\n s_add_u32 s{sT2}, s{sT2}, s{sQKV}")
        for m, base in enumerate((KB, QB, VB)):
            A(f"s_add_u32 m0, s{sC}, {m*8192}\n s_add_u32 s{sT}, s{sT2}, {base}")
            for j in range(2): A(f"buffer_load_dwordx4 v{vL16}, {WS}, s{sT} offen offset:{j*1024} sc1 lds")
        A(f"s_add_u32 s{sQKV}, s{sQKV}, {64*8192}\n s_xor_b32 s{sBuf}, s{sBuf}, 0x8000")
    A(f"s_mov_b32 s{sBuf}, 0x10000\n v_add_u32 v{vQR}, 0x10000, v{vL16}\n s_mov_b32 s{sNeed}, 1")
    poll_words(A, vFP, vL16, sFP, FP, sNeed, "15", sC, 0x32, True)
    dma_qkv()
    A("s_waitcnt vmcnt(0)\n s_barrier")
    MXv = TM+4; XR = TM+8
    def rscale(r, n):
        for i in range(0, n, 2):
            rnd2(A, r+i, r+i+1, r+i, r+i+1, TM)
            A(f"v_mul_f32 v{r+i}, s{sT}, v{r+i}\n v_mul_f32 v{r+i+1}, s{sT}, v{r+i+1}")
            rnd2(A, r+i, r+i+1, r+i, r+i+1, TM)
    def prework():
        for ks in range(8):
            A(f"ds_read_b128 {v(KF+4*ks,4)}, v{vQR} offset:{ks*1024}")
            A(f"ds_read_b128 {v(QF+4*ks,4)}, v{vQR} offset:{8192+ks*1024}")
            if ks >= 6:
                A(f"s_waitcnt lgkmcnt(12)")
                A(f"v_mfma_f32_32x32x16_bf16 {v(SX,16)}, {v(KF+4*(ks-6),4)}, {v(QF+4*(ks-6),4)}, {'0' if ks == 6 else v(SX,16)}")
        A(f"s_lshl_b32 s{sT}, s{sW}, 11\n v_add_u32 v{t0}, s{sT}, v{vQR}")
        for j in range(2): A(f"ds_read_b128 {v(VF+4*j,4)}, v{t0} offset:{16384+j*1024}")
        for ks in range(2, 8):
            A(f"s_waitcnt lgkmcnt({14-2*(ks-1)})")
            A(f"v_mfma_f32_32x32x16_bf16 {v(SX,16)}, {v(KF+4*ks,4)}, {v(QF+4*ks,4)}, {v(SX,16)}")
        A(f"v_xor_b32 v{vQR}, 0x8000, v{vQR}")
    def prework2():
        A(f"s_mov_b32 s{sT}, {SCALE}")
        rscale(SX, 16)
    def prework3():
        A(f"v_mov_b32 v{TM+2}, 0xce6e6b28")
        for r in range(16): A(f"v_cndmask_b32 v{SX+r}, v{TM+2}, v{SX+r}, {MK(r)}")
        A(f"v_max3_f32 v{MXv}, v{SX}, v{SX+1}, v{SX+2}")
        for r in range(3, 15, 2): A(f"v_max3_f32 v{MXv}, v{MXv}, v{SX+r}, v{SX+r+1}")
        A(f"v_max_f32 v{MXv}, v{MXv}, v{SX+15}")
    sPend = 91
    def flush_fh2(cnt=0):
        l = A.newlab('FH')
        A(f"""s_cmp_eq_u32 s{sPend}, 0
        s_cbranch_scc1 {l}
        s_waitcnt vmcnt({cnt})
        v_mov_b32 v{t0}, s{sPend}
        s_mov_b64 exec, 1
        buffer_store_dword v{t0}, v{vZ}, {WS}, s{sFH} offen sc1
        s_mov_b64 exec, -1
        s_mov_b32 s{sPend}, 0""")
        A.label(l)
    A(f"s_mov_b32 s{sPend}, 0\n ds_write_b32 v{vZ}, v{vZ} offset:{L_RDY}")
    prework(); A.nop(10); prework2(); prework3()
    A.label('L_A_LOOP')
    ta(0)
    A(f"s_lshl_b32 s{sNeed}, s{sN}, 1\n s_add_u32 s{sNeed}, s{sNeed}, s{sSUB}\n s_add_u32 s{sNeed}, s{sNeed}, 1")
    A(f"""s_sub_u32 s{sT2}, s{sW}, s{sN}
    s_and_b32 s{sT2}, s{sT2}, 3
    s_cmp_eq_u32 s{sT2}, 3
    s_cbranch_scc1 L_A_EXD""")
    poll_words(A, vFT, vL4, sFTo, 0, sNeed, "1", sC, 0x33, True)
    ta(1)
    A(f"""buffer_load_dwordx4 {v(TM+16,4)}, v{vL16}, {WS}, s{sEX} offen sc1
    s_cmp_lg_u32 s{sT2}, 0
    s_cbranch_scc1 L_A_EX1
    s_cmp_eq_u32 s{sW}, 0
    s_cselect_b32 s{sT}, 3, -1
    s_lshl_b32 s{sT2}, s{sT}, 10
    s_add_u32 s{sT2}, s{sT2}, s{sEX}
    s_lshl_b32 s{sT}, s{sT}, 9
    buffer_load_dwordx4 {v(TM+20,4)}, v{vL16}, {WS}, s{sT2} offen sc1
    v_add_u32 v{t0}, s{sT}, v{vKW}
    v_add_u32 v{t1}, s{sT}, v{vVW}
    s_waitcnt vmcnt(0)
    ds_write2_b32 v{t0}, v{TM+20}, v{TM+21} offset0:0 offset1:4
    ds_write2_b32 v{t1}, v{TM+22}, v{TM+23} offset0:0 offset1:64""")
    A.label('L_A_EX1')
    A(f"""s_waitcnt vmcnt(0)
    ds_write2_b32 v{vKW}, v{TM+16}, v{TM+17} offset0:0 offset1:4
    ds_write2_b32 v{vVW}, v{TM+18}, v{TM+19} offset0:0 offset1:64""")
    A(f"v_mov_b32 v{t0}, s{sNeed}\n ds_write_b32 v{vZ}, v{t0} offset:{L_RDY}\n s_branch L_A_EXE")
    A.label('L_A_EXD')
    A(f"""ds_read_b32 v{t0}, v{vZ} offset:{L_RDY}
    s_waitcnt lgkmcnt(0)
    v_cmp_eq_u32 vcc, s{sNeed}, v{t0}
    s_cbranch_vccnz L_A_EXE""")
    flush_fh2()
    A.label('L_A_EXE')
    A("s_waitcnt lgkmcnt(0)\n s_barrier")
    ta(2)
    for ks in range(8): A(f"ds_read_b128 {v(KMF+4*ks,4)}, v{vKR} offset:{L_KM+ks*256}")
    VMf = TM+16
    A(f"ds_read_b64 {v(VMf,2)}, v{vVR}")
    for ks in range(8):
        A(f"s_waitcnt lgkmcnt({8-ks})")
        A(f"v_mfma_f32_32x32x16_bf16 {v(SMm,16)}, {v(KMF+4*ks,4)}, {v(QF+4*ks,4)}, {'0' if ks == 0 else v(SMm,16)}")
    A(f"s_cmp_eq_u32 s{sN}, 31\n s_cbranch_scc1 L_A_NODMA\n s_add_u32 s{sNeed}, s{sN}, 2")
    poll_words(A, vFP, vL16, sFP, FP, sNeed, "15", sC, 0x32, True)
    dma_qkv()
    A.label('L_A_NODMA')
    load9(A, XR, XR, vGa, vGb, s(SR0,4), f"s{sRow}", 0, sc='')
    A(f"s_mov_b32 s{sT}, {SCALE}")
    A.nop(7)
    rscale(SMm, 4)
    A(f"""v_max3_f32 v{MXv}, v{MXv}, v{SMm}, v{SMm+1}
    v_max3_f32 v{MXv}, v{MXv}, v{SMm+2}, v{SMm+3}
    v_mov_b32 v{MXv+1}, v{MXv}
    s_mov_b32 s{sT}, {LOG2E}
    s_nop 0
    v_permlane32_swap_b32 v{MXv}, v{MXv+1}
    v_max_f32 v{MXv}, v{MXv}, v{MXv+1}
    v_mul_f32 v{MXv}, s{sT}, v{MXv}""")
    vals = [SX+i for i in range(16)] + [SMm+i for i in range(4)]
    for r in vals: A(f"v_fma_f32 v{r}, v{r}, s{sT}, -v{MXv}")
    for r in vals: A(f"v_exp_f32 v{r}, v{r}")
    PP = KMF
    for i in range(10): A(f"v_cvt_pk_bf16_f32 v{PP+i}, v{vals[2*i]}, v{vals[2*i+1]}")
    A("s_waitcnt lgkmcnt(0)")
    Zr = TM+6
    A(f"v_add_f32 v{Zr}, v{vals[0]}, v{vals[1]}")
    A(f"v_mfma_f32_32x32x16_bf16 {v(OO,16)}, {v(VF,4)}, {v(PP,4)}, 0")
    for r in vals[2:8]: A(f"v_add_f32 v{Zr}, v{Zr}, v{r}")
    A(f"v_mfma_f32_32x32x16_bf16 {v(OO,16)}, {v(VF+4,4)}, {v(PP+4,4)}, {v(OO,16)}")
    for r in vals[8:14]: A(f"v_add_f32 v{Zr}, v{Zr}, v{r}")
    A(f"v_mfma_f32_32x32x8_bf16 {v(OO,16)}, {v(VMf,2)}, {v(PP+8,2)}, {v(OO,16)}")
    for r in vals[14:]: A(f"v_add_f32 v{Zr}, v{Zr}, v{r}")
    A(f"""v_mov_b32 v{Zr+1}, v{Zr}
    s_nop 1
    v_permlane32_swap_b32 v{Zr}, v{Zr+1}
    v_add_f32 v{Zr}, v{Zr}, v{Zr+1}
    v_rcp_f32 v{Zr}, v{Zr}
    s_nop 0""")
    for r in range(0, 16, 2): A(f"v_pk_mul_f32 {v(OO+r,2)}, {v(OO+r,2)}, {v(Zr,2)} op_sel_hi:[1,0]")
    for i in range(8): A(f"v_cvt_pk_bf16_f32 v{SX+i}, v{OO+2*i}, v{OO+2*i+1}")
    A(f"""ds_write_b128 v{vOW}, {v(SX,4)}
    ds_write_b128 v{vOW}, {v(SX+4,4)} offset:1024
    s_waitcnt lgkmcnt(0)
    s_barrier""")
    ta(3)
    OF = KMF
    for tt in range(2):
        for kk in range(4): A(f"ds_read_b128 {v(OF+(tt*4+kk)*4,4)}, v{vOR} offset:{L_OO+kk*2048+tt*256}")
    ACC = [[QF + (tt*9 + t)*4 for t in range(9)] for tt in range(2)]
    sTag = sFA
    A(f"s_bfe_u32 s{sTag}, s{sN}, 0x10001")
    strow = lambda tt, r: st_row(ACC, tt, r, SX + 8*(r & 1), vSa, vSb, sPA, sT, sTag)
    sidel = []
    for tt in range(2):
        n = 0
        for kk in range(4):
            A(f"s_waitcnt lgkmcnt({7-(tt*4+kk)})")
            for t in range(9):
                d = v(ACC[tt][t], 4)
                A(f"v_mfma_f32_16x16x32_bf16 {d}, {v(OF+(tt*4+kk)*4,4)}, {a(WF(t,kk),4)}, {'0' if kk == 0 else d}")
                n += 1
                if tt == 1 and n > 3 and sidel:
                    A(sidel.pop(0))
                    if sidel and n % 3 == 0: A(sidel.pop(0))
        if tt == 0: sidel = sum([strow(0, r) for r in range(4)], [])
    assert not sidel
    ta(4)
    A.nop(4)
    for r in range(4):
        for x in strow(1, r): A(x)
    ta(5)
    A("s_waitcnt vmcnt(16)")
    flush_fh2(16)
    A(f"s_cmp_eq_u32 s{sN}, 31\n s_cbranch_scc1 L_A_NOPRE\n s_barrier")
    prework(); A.nop(10); prework2()
    A.label('L_A_NOPRE')
    ta(6); ta(7)
    A(f"s_add_u32 s{sNeed}, s{sN}, 1")
    reduce_row(A, OO, SEL, SMm, vRa, vRb, sPR, sT, vWa, vWb, L_R, L_E, sTag, sC, 0x34, mid=prework3)
    ta(8)
    A(f"""s_and_b32 s{sT}, s{sN}, 3
    s_cmp_lg_u32 s{sT}, s{sW}
    s_cbranch_scc1 L_A_NOLN""")
    Y = KMF; E_ = SMm; X9 = OO; TL = KMF+12
    unpack9(A, X9, XR)
    read_sums(A, Y, E_, vLa, vLb, L_R, L_E)
    flush_fh2()
    rnd9(A, Y, TL)
    op9(A, 'mul', Y, GA)
    rnd9(A, Y, TL)
    op9(A, 'add', Y, X9)
    A(f"s_add_u32 s{sT}, s{sRow}, {X1}")
    store9(A, Y, TM+24, vGa, vGb, WS, f"s{sT}")
    unpack9(A, Y, TM+24)
    ln9(A, Y, TL)
    op9(A, 'mul', Y, CB)
    rnd9(A, Y, TL)
    op9(A, 'add', Y, SBv)
    A(f"s_add_u32 s{sT}, s{sRow}, {H2}")
    store9(A, Y, TM+32, vGa, vGb, WS, f"s{sT}")
    A(f"s_mov_b32 s{sPend}, s{sNeed}")
    A.label('L_A_NOLN')
    ta(9)
    A(f"""s_bitcmp1_b32 s{sN}, 0
    s_mov_b32 s{sT}, 0x120000
    s_cselect_b32 s{sT}, {(-0x120000) & 0xffffffff}, s{sT}
    s_add_u32 s{sPA}, s{sPA}, s{sT}
    s_add_u32 s{sPR}, s{sPR}, s{sT}
    s_add_u32 s{sEX}, s{sEX}, {64*4096}
    s_add_u32 s{sRow}, s{sRow}, {64*1152}
    s_add_u32 s{sN}, s{sN}, 1
    s_cmp_lt_u32 s{sN}, 32
    s_cbranch_scc1 L_A_LOOP""")
    flush_fh2()
    stamp(A, 3, TM)
    A("s_endpgm")
```

```python
from common import *
import common
from role_p import arrive_init
from role_a import *

def gen_F(A):
    A.label('L_ROLE_F')
    def ta(i):
        if common.DEV and common.TS:
            l = A.newlab('TA')
            A(f"s_cmp_lg_u32 s{sN}, 12\n s_cbranch_scc1 {l}")
            stamp(A, 4+i, 132)
            A.label(l)
    sT, sC, sS, sLds, sGU, sWd, sMx, sPF, sPR, sFF, sRow, sNeed, sT2, sN, sH = range(70, 85)
    lane, t0, t1, vZ = 0, 1, 2, 3
    W = WRegs(134)
    L_H = 0; L_ACT = 36864; L_A16 = L_ACT + 8192; L_R = L_ACT; L_E = L_ACT + 2048; L_WD = 46080; L_MIX = 119808
    mk_srd(A, SR0, PG, 576*9216); mk_srd(A, SR1, PU, 576*9216); mk_srd(A, SR2, PD, 4608*1152); mk_srd(A, SR3, POUT, 2048*1152)
    A(f"""v_mov_b32 v{vZ}, 0
    v_lshlrev_b32 v4, 4, v0
    s_mul_i32 s{sT}, s{sSUB}, 0x240000
    s_mul_i32 s{sPR}, s{sCU}, 36864
    s_add_u32 s{sPR}, s{sPR}, s{sT}
    s_add_u32 s{sPR}, s{sPR}, {PF}""")
    if common.WARM:
        A(f"""s_lshl_b32 s{sT2}, s{sSUB}, 5
        s_add_u32 s{sT2}, s{sT2}, s{sCU}
        s_lshl_b32 s{sT2}, s{sT2}, 2
        s_add_u32 s{sT2}, s{sT2}, s{sW}""")
        for ptr, size in ((PWK, 4718592), (PWQ, 4718592), (PWV, 4718592), (PWO, 4718592), (PG, 5308416), (PU, 5308416), (PD, 5308416))[:common.WARM]:
            mk_srd(A, SR4, ptr, size)
            per = size // 384
            A(f"s_mul_i32 s{sT}, s{sT2}, {per}")
            for i in range((per + 1023)//1024):
                A(f"buffer_load_dwordx4 {v(16+4*(i%8),4)}, v4, {s(SR4,4)}, s{sT} offen offset:{(i%4)*1024}")
                if i % 4 == 3: A(f"s_add_u32 s{sT}, s{sT}, 4096")
            A("s_waitcnt vmcnt(40)")
    if common.FOFF == 1: A("s_endpgm")
    init_rows(A, 4, 8, sPR, sT)
    if common.FDELAY == 1: wait_counter(A, D_MOD, 54, t0, vZ, sC, 0x42, sleep=16)
    if common.FDELAY == 2: wait_counter(A, D_H1, 64, t0, vZ, sC, 0x42, sleep=16)
    A("s_waitcnt vmcnt(0)\n s_barrier")
    arrive_init(A, t0, vZ)
    bits = mkbits(A, lane, t0)
    vL16, vL4, vFH, vFF, vWL, vMR, vAW0, vAW1, vA16W, vOR, vA16R = range(4, 15)
    vB = [15, 16, 17, 18]
    vSa, vSb, vRa, vRb, vWa, vWb, vLa, vLb, vGa, vGb = range(19, 29)
    vDH = 29
    GB = 38
    XR = 47
    XR = 48
    SEL = 56
    WK = 60
    vDg, vDd, vD8, vDx, vTg, vTd, vT16, vTm, vMW = range(WK+20, WK+29)
    bits(t1, [(2, 4, 0)])
    A(f"v_mul_u32_u24 v{vDg}, 9216, v{t1}\n v_mul_u32_u24 v{vDd}, 1152, v{t1}\n v_mov_b32 v{vD8}, v{vDd}")
    bits(vDg, [(0, 2, 4)], acc=True); bits(vDd, [(0, 2, 4)], acc=True); bits(vD8, [(0, 1, 4)], acc=True)
    A(f"""v_bfe_u32 v{t0}, v{lane}, 1, 1
    v_mul_u32_u24 v{t0}, {32*1152}, v{t0}
    v_add_u32 v{vD8}, v{vD8}, v{t0}""")
    bits(t1, [(1, 5, 0)])
    A(f"v_mul_u32_u24 v{vDx}, 9216, v{t1}")
    bits(vDx, [(0, 1, 4)], acc=True)
    A(f"""s_mul_i32 s{sGU}, s{sCU}, 288
    s_mul_i32 s{sT}, s{sW}, {32*9216}
    s_add_u32 s{sMx}, s{sGU}, s{sT}
    s_add_u32 s{sMx}, s{sMx}, 256
    s_lshl_b32 s{sT}, s{sW}, 6
    s_add_u32 s{sGU}, s{sGU}, s{sT}
    s_mul_i32 s{sWd}, s{sCU}, {144*1152}
    s_mul_i32 s{sT}, s{sW}, 288
    s_add_u32 s{sWd}, s{sWd}, s{sT}
    s_lshl_b32 s{sLds}, s{sW}, 11
    s_add_u32 s{sLds}, s{sLds}, {L_MIX}
    v_lshlrev_b32 v{vL16}, 4, v{lane}
    v_lshlrev_b32 v{vL4}, 2, v{lane}
    v_add_u32 v{vMW}, s{sLds}, v{vL16}""")
    bits(vTm, [(0, 1, 10), (4, 2, 8), (2, 2, 5), (1, 1, 3)])
    A(f"v_add_u32 v{vTm}, s{sLds}, v{vTm}")
    jobs = []
    for i in range(5):
        post = [(lambda sb, q=q: f"ds_write_b128 v{vMW}, {v(WK+4*q,4)} offset:{sb+q*1024}") for q in range(2)] + ["s_waitcnt lgkmcnt(0)"]
        jobs.append(dict(dma=[(SR0, vDx, sMx, i*128*9216, 0), (SR1, vDx, sMx, i*128*9216, 1024)],
                         reads=[(v(WK+4*mt+2*yy, 2), vTm, yy*128 + mt*16) for mt in range(2) for yy in range(2)], post=post))
    load_frags(A, jobs, 5, 8192, sLds, sT)
    A(f"""s_mul_i32 s{sLds}, s{sW}, 18432
    s_add_u32 s{sLds}, s{sLds}, {L_WD}
    v_add_u32 v{vWL}, s{sLds}, v{vL16}""")
    bits(vTg, [(4, 2, 9), (2, 2, 6), (0, 2, 3)])
    bits(vTd, [(4, 2, 8), (2, 2, 6), (0, 2, 3)])
    bits(vT16, [(4, 1, 6), (5, 1, 8), (2, 1, 7), (3, 1, 9), (0, 2, 3)])
    for r in (vTg, vTd, vT16): A(f"v_add_u32 v{r}, s{sLds}, v{r}")
    GU = lambda m, gi, ks: ((m*2 + gi)*18 + ks)*4
    DN = lambda t, kk: 288 + (kk*9 + t)*4
    D16 = lambda t: 360 + 2*t
    jobs = []
    for ks in range(18):
        for m, srd in enumerate((SR0, SR1)):
            jobs.append(dict(dma=[(srd, vDg, sGU, (32*ks + 16*i)*9216, i*1024) for i in range(2)],
                             reads=[(W(GU(m, gi, ks) + 2*yy, 2), vTg, yy*256 + gi*32) for gi in range(2) for yy in range(2)]))
    for kk in range(2):
        for y in range(4):
            jobs.append(dict(dma=[(SR2, vDd, sWd, (32*kk + 16*i)*1152 + y*64, i*1024) for i in range(2)],
                             reads=[(W(DN(2*y+u, kk) + 2*yy, 2), vTd, yy*1024 + u*32) for u in range(2) for yy in range(2)]))
    jobs.append(dict(dma=[(SR2, vD8, sWd, (16*i)*1152 + 256, i*1024) for i in range(2)],
                     reads=[(W(DN(8, u) + 2*yy, 2), vTd, yy*1024 + u*32) for u in range(2) for yy in range(2)]))
    for y in range(5):
        jobs.append(dict(dma=[(SR2, vDd, sWd, 128*1152 + y*64, 0)],
                         reads=[(W(D16(2*y+u), 2), vT16, u*32) for u in range(2) if 2*y+u < 9]))
    while len(jobs) % 9: jobs.append(dict(dma=[], reads=[]))
    ldsW = {}
    post = [(lambda sb, q=q: f"ds_write_b128 v{vWL}, {v(WK+4*q,4)} offset:{sb+q*1024}") for q in range(2)] + ["s_waitcnt lgkmcnt(0)"]
    n = 0
    for kk in (2, 3):
        for y in range(4):
            for u in range(2): ldsW[(2*y+u, kk)] = n*2048 + u*1024
            jobs.append(dict(dma=[(SR2, vDd, sWd, (32*kk + 16*i)*1152 + y*64, i*1024) for i in range(2)],
                             reads=[(v(WK+4*u+2*yy, 2), vTd, yy*1024 + u*32) for u in range(2) for yy in range(2)], post=post))
            n += 1
    for u in range(2): ldsW[(8, 2+u)] = n*2048 + u*1024
    jobs.append(dict(dma=[(SR2, vD8, sWd, (64 + 16*i)*1152 + 256, i*1024) for i in range(2)],
                     reads=[(v(WK+4*u+2*yy, 2), vTd, yy*1024 + u*32) for u in range(2) for yy in range(2)], post=post))
    load_frags(A, jobs, 9, 2048, sLds, sT)
    stamp(A, 1, WK)
    if common.FOFF == 2: A("s_endpgm")
    reduce_setup(A, bits, lane, t0, t1, SEL, vSa, vSb, vRa, vRb, vWa, vWb, vLa, vLb, vGa, vGb, L_R, L_E, sT)
    wait_counter(A, D_INIT, N_INIT, t0, vZ, sC, 0x41)
    wait_counter(A, D_MOD, 54, t0, vZ, sC, 0x42)
    A(f"s_mov_b32 s{sT}, {MOD+5*1152}")
    load9(A, GB, WK, vGa, vGb, WS, f"s{sT}", 0)
    A("s_waitcnt vmcnt(0)")
    unpack9(A, GB, WK)
    for i in range(9):
        A(f"""v_add_u32 v{t0}, {i*64}, v{lane}
        v_mul_u32_u24 v{t1}, 911, v{t0}
        v_lshrrev_b32 v{t1}, 17, v{t1}
        s_lshl_b32 s{sT}, s{sW}, 2
        v_add_u32 v{t1}, s{sT}, v{t1}
        v_and_b32 v{t1}, 7, v{t1}
        v_xor_b32 v{t0}, v{t0}, v{t1}
        v_lshlrev_b32 v{vDH+i}, 4, v{t0}""")
    bits(t1, [(0, 4, 0)])
    A(f"v_mul_u32_u24 v{vB[0]}, 1152, v{t1}")
    A(f"""v_bfe_u32 v{t0}, v{lane}, 1, 3
    v_bfe_u32 v{t1}, v{lane}, 4, 2
    v_xor_b32 v{t0}, v{t0}, v{t1}
    v_xor_b32 v{t1}, 4, v{t0}
    v_lshl_add_u32 v{vB[1]}, v{t1}, 4, v{vB[0]}
    v_lshl_add_u32 v{vB[0]}, v{t0}, 4, v{vB[0]}
    s_lshr_b32 s{sT}, s{sW}, 1
    s_xor_b32 s{sT2}, s{sT}, 1
    s_mul_i32 s{sC}, s{sT2}, 18432
    v_add_u32 v{vB[2]}, s{sC}, v{vB[0]}
    v_add_u32 v{vB[3]}, s{sC}, v{vB[1]}
    s_mul_i32 s{sC}, s{sT}, 18432
    v_add_u32 v{vB[0]}, s{sC}, v{vB[0]}
    v_add_u32 v{vB[1]}, s{sC}, v{vB[1]}""")
    bits(vOR, [(4, 2, 9), (0, 4, 4)])
    A(f"""s_lshl_b32 s{sC}, s{sW}, 11
    s_add_u32 s{sC}, s{sC}, {L_ACT}
    v_add_u32 v{vAW0}, s{sC}, v{vOR}
    s_lshl_b32 s{sC}, s{sT2}, 8
    v_add_u32 v{vAW1}, s{sC}, v{vAW0}
    s_lshl_b32 s{sC}, s{sT}, 8
    v_add_u32 v{vAW0}, s{sC}, v{vAW0}""")
    bits(vA16R, [(4, 2, 8), (0, 4, 3)])
    A(f"""s_lshl_b32 s{sC}, s{sT}, 7
    s_and_b32 s{sT2}, s{sW}, 1
    s_lshl_b32 s{sT}, s{sT2}, 2
    s_add_u32 s{sC}, s{sC}, s{sT}
    s_add_u32 s{sC}, s{sC}, {L_A16}
    v_add_u32 v{vA16W}, s{sC}, v{vA16R}
    s_lshl_b32 s{sC}, s{sT2}, 10
    s_add_u32 s{sC}, s{sC}, {L_MIX}
    v_add_u32 v{vMR}, s{sC}, v{vL16}
    s_mul_i32 s{sT}, s{sSUB}, 0x240000
    s_add_u32 s{sT}, s{sT}, {PF}
    s_mul_i32 s{sPF}, s{sCU}, 1152
    s_add_u32 s{sPF}, s{sPF}, s{sT}
    s_mul_i32 s{sPR}, s{sCU}, 36864
    s_add_u32 s{sPR}, s{sPR}, s{sT}
    s_mov_b32 s{sS}, s{sSUB}
    s_mul_i32 s{sLds}, s{sW}, 9216
    s_mov_b32 s{sN}, 0
    s_barrier""")
    stamp(A, 2, WK)
    A.label('L_F_LOOP')
    ta(0)
    A(f"""s_lshr_b32 s{sNeed}, s{sS}, 1
    s_bfe_u32 s{sFF}, s{sN}, 0x10001
    s_add_u32 s{sNeed}, s{sNeed}, 1
    s_and_b32 s{sT2}, s{sS}, 1
    s_lshl_b32 s{sT2}, s{sT2}, 7
    s_add_u32 s{sT2}, s{sT2}, {FH2}
    s_mul_i32 s{sH}, s{sS}, 36864
    s_mul_i32 s{sRow}, s{sCU}, 1152
    s_add_u32 s{sRow}, s{sRow}, s{sH}
    s_add_u32 s{sH}, s{sH}, s{sLds}
    s_add_u32 s{sH}, s{sH}, {H2}""")
    poll_words(A, vFH, vL4, sT2, 0, sNeed, "lo32", sC, 0x43, False)
    ta(1)
    for i in range(9):
        A(f"s_add_u32 m0, s{sLds}, {i*1024}\n s_nop 0")
        A(f"buffer_load_dwordx4 v{vDH+i}, {WS}, s{sH} offen sc1 lds")
    A(f"s_add_u32 s{sT}, s{sRow}, {X1}")
    load9(A, XR, XR, vGa, vGb, WS, f"s{sT}", 0)
    A("s_waitcnt vmcnt(2)\n s_barrier")
    ta(2)
    ACCG = lambda m, gi, sl: WK + ((m*2 + gi)*2 + sl)*4
    ACCM = WK + 32
    BF = WK + 36
    D = Cnt(A, 'lgkmcnt', 15)
    def rd(ks):
        b = BF + (ks % 3)*12
        for sl in range(2): D.op(f"ds_read_b128 {v(b+4*sl,4)}, v{vB[sl*2+(ks&1)]} offset:{L_H+(ks>>1)*128}", ks)
        D.op(f"ds_read_b128 {v(b+8,4)}, v{vMR} offset:{ks*2048}", ks)
    rd(0); rd(1)
    for ks in range(18):
        if ks + 2 < 18: rd(ks + 2)
        D.need(ks)
        b = BF + (ks % 3)*12
        for m in range(2):
            for gi in range(2):
                for sl in range(2):
                    d = v(ACCG(m, gi, sl), 4)
                    A(f"v_mfma_f32_16x16x32_bf16 {d}, {W(GU(m,gi,ks),4)}, {v(b+4*sl,4)}, {'0' if ks == 0 else d}")
        d = v(ACCM, 4)
        A(f"v_mfma_f32_16x16x32_bf16 {d}, {v(b+8,4)}, {v(b,4)}, {'0' if ks == 0 else d}")
    T = BF
    ta(3)
    def actpair(g, u, dst):
        rnd2(A, g, g+1, g, g+1, T); rnd2(A, u, u+1, u, u+1, T)
        A(f"""v_mul_f32 v{T}, 0xbfb8aa3b, v{g}
        v_mul_f32 v{T+1}, 0xbfb8aa3b, v{g+1}
        v_exp_f32 v{T}, v{T}
        v_exp_f32 v{T+1}, v{T+1}
        v_add_f32 v{T}, 1.0, v{T}
        v_add_f32 v{T+1}, 1.0, v{T+1}
        v_rcp_f32 v{T}, v{T}
        v_rcp_f32 v{T+1}, v{T+1}
        v_mul_f32 v{g}, v{g}, v{T}
        v_mul_f32 v{g+1}, v{g+1}, v{T+1}""")
        rnd2(A, g, g+1, g, g+1, T)
        A(f"""v_mul_f32 v{g}, v{g}, v{u}
        v_mul_f32 v{g+1}, v{g+1}, v{u+1}
        v_cvt_pk_bf16_f32 v{dst}, v{g}, v{g+1}""")
    A.nop(4)
    for sl in range(2):
        o = BF + 4 + 4*sl
        for gi in range(2):
            for hh in range(2): actpair(ACCG(0, gi, sl) + 2*hh, ACCG(1, gi, sl) + 2*hh, o + 2*gi + hh)
        A(f"ds_write_b128 v{vAW0 if sl == 0 else vAW1}, {v(o,4)}")
    A(f"""v_permlane16_swap_b32 v{ACCM}, v{ACCM+1}
    v_permlane16_swap_b32 v{ACCM+2}, v{ACCM+3}
    v_mov_b32 v{T+12}, v{ACCM+1}
    v_mov_b32 v{ACCM+1}, v{ACCM+2}
    v_mov_b32 v{ACCM+2}, v{T+12}""")
    actpair(ACCM, ACCM+2, T+12)
    A(f"""ds_write_b32 v{vA16W}, v{T+12}
    s_waitcnt lgkmcnt(0)
    s_barrier""")
    ta(4)
    AF = WK + 36
    SG = WK + 56
    ACC = [[WK + 4*t for t in range(9)]]*2
    for tt in range(2):
        D.reset()
        for kk in range(4): D.op(f"ds_read_b128 {v(AF+4*kk,4)}, v{vOR} offset:{L_ACT+kk*2048+tt*256}", ('a', kk))
        D.op(f"ds_read_b64 {v(AF+16,2)}, v{vA16R} offset:{L_A16+tt*128}", ('a', 4))
        seq = [(t, kk) for kk in (2, 3) for t in range(9)]
        for i in range(4): D.op(f"ds_read_b128 {v(SG+4*i,4)}, v{vWL} offset:{ldsW[seq[i]]}", ('w', i))
        regseq = [(t, kk) for kk in (0, 1, 4) for t in range(9)]
        def rm(t, kk):
            d = v(ACC[tt][t], 4)
            D.need(('a', kk))
            if kk == 4: A(f"v_mfma_f32_16x16x16_bf16 {d}, {v(AF+16,2)}, {W(D16(t),2)}, {d}")
            else: A(f"v_mfma_f32_16x16x32_bf16 {d}, {v(AF+4*kk,4)}, {W(DN(t,kk),4)}, {'0' if kk == 0 else d}")
        for x in regseq[:9]: rm(*x)
        for i in range(18):
            t, kk = seq[i]
            d = v(ACC[tt][t], 4)
            D.need(('a', kk), ('w', i))
            A(f"v_mfma_f32_16x16x32_bf16 {d}, {v(AF+4*kk,4)}, {v(SG+4*(i%4),4)}, {d}")
            if i + 4 < 18: D.op(f"ds_read_b128 {v(SG+4*(i%4),4)}, v{vWL} offset:{ldsW[seq[i+4]]}", ('w', i+4))
            rm(*regseq[9 + (i + 4) % 18])
        A.nop(8)
        for r in range(4):
            for x in st_row(ACC, tt, r, SG + 8*(r & 1), vSa, vSb, sPF, sT, sFF): A(x)
    ta(5); ta(6)
    A("s_waitcnt vmcnt(0)\n s_barrier")
    ta(7)
    reduce_row(A, WK, SEL, WK+36, vRa, vRb, sPR, sT, vWa, vWb, L_R, L_E, sFF, sC, 0x44)
    ta(8)
    A(f"""s_and_b32 s{sT}, s{sN}, 3
    s_cmp_lg_u32 s{sT}, s{sW}
    s_cbranch_scc1 L_F_NOLN""")
    Y = WK; E_ = WK+12; X9 = WK+24; TM = WK+40
    unpack9(A, X9, XR)
    read_sums(A, Y, E_, vLa, vLb, L_R, L_E)
    rnd9(A, Y, TM)
    op9(A, 'mul', Y, GB)
    rnd9(A, Y, TM)
    op9(A, 'add', Y, X9)
    store9(A, Y, TM+4, vGa, vGb, s(SR3,4), f"s{sRow}", sc='')
    A.label('L_F_NOLN')
    ta(9)
    A(f"""s_bitcmp1_b32 s{sN}, 0
    s_mov_b32 s{sT}, 0x120000
    s_cselect_b32 s{sT}, {(-0x120000) & 0xffffffff}, s{sT}
    s_add_u32 s{sPF}, s{sPF}, s{sT}
    s_add_u32 s{sPR}, s{sPR}, s{sT}
    s_add_u32 s{sN}, s{sN}, 1
    s_add_u32 s{sS}, s{sS}, 3
    s_cmp_lt_u32 s{sS}, 64
    s_cbranch_scc1 L_F_LOOP""")
    stamp(A, 3, WK+50)
    A("s_endpgm")
```

```python
from common import *

def rotl3(x): return ((x << 1) & 7) | (x >> 2)
def rotr3(x): return (x >> 1) | ((x & 1) << 2)

def gen_P(A):
    A.label('L_ROLE_P')
    W = WRegs(80)
    mk_srd(A, SR0, PWQ, 576*8192); mk_srd(A, SR1, PWK, 576*8192); mk_srd(A, SR2, PWV, 576*8192)
    sLds, sT, sSrc, sN, sOut, sH, sFl, sC = 70, 71, 72, 73, 74, 75, 76, 77
    vDma, vTrQK, vTrV, vL16, vSt, vZ, vT0, vT1, vT2 = 1, 2, 3, 4, 5, 6, 7, 8, 9
    A(f"""v_mov_b32 v{vZ}, 0
    s_lshl_b32 s{sFl}, s{sSUB}, 5
    s_add_u32 s{sFl}, s{sFl}, s{sCU}
    s_lshl_b32 s{sFl}, s{sFl}, 7
    s_lshl_b32 s{sT}, s{sW}, 4
    s_add_u32 s{sFl}, s{sFl}, s{sT}
    s_add_u32 s{sFl}, s{sFl}, {FP}
    v_lshlrev_b32 v{vL16}, 4, v0
    s_mov_b64 exec, 15
    buffer_store_dword v{vZ}, v{vL16}, {WS}, s{sFl} offen sc1
    s_mov_b64 exec, -1""")
    vTrQK2, vTrV2 = 11, 12
    A(f"""v_lshrrev_b32 v{vT0}, 4, v0
    v_lshlrev_b32 v{vDma}, 13, v{vT0}
    v_and_b32 v{vT0}, 15, v0
    v_lshl_add_u32 v{vDma}, v{vT0}, 4, v{vDma}
    s_lshl_b32 s{sLds}, s{sW}, 12
    s_lshl_b32 s{sSrc}, s{sCU}, 8
    s_lshl_b32 s{sT}, s{sW}, 17
    s_add_u32 s{sSrc}, s{sSrc}, s{sT}
    v_lshrrev_b32 v{vT0}, 5, v0
    v_lshlrev_b32 v{vT0}, 3, v{vT0}
    v_bfe_u32 v{vT1}, v0, 2, 2
    v_add_u32 v{vT0}, v{vT0}, v{vT1}
    v_lshlrev_b32 v{vT0}, 8, v{vT0}
    s_lshl_b32 s{sT}, s{sW}, 6
    v_add_u32 v{vT0}, s{sT}, v{vT0}
    v_bfe_u32 v{vT1}, v0, 4, 1
    v_lshl_add_u32 v{vT0}, v{vT1}, 5, v{vT0}
    v_and_b32 v{vT1}, 3, v0
    v_lshl_add_u32 v{vTrV}, v{vT1}, 3, v{vT0}
    v_and_b32 v{vT1}, 1, v0
    v_lshl_add_u32 v{vT0}, v{vT1}, 4, v{vT0}
    v_bfe_u32 v{vT1}, v0, 1, 1
    v_lshl_add_u32 v{vTrQK}, v{vT1}, 3, v{vT0}""")
    rounds = []
    for m_, (srd, vtr) in enumerate([(SR1, vTrQK), (SR2, vTrV), (SR0, vTrQK)]):
        for r in range(9):
            def rd(so, m_=m_, r=r, vtr=vtr):
                A(f"v_add_u32 v{vT2}, {so}, v{vtr}")
                for ga in range(4):
                    base = (m_*36 + 4*r + ga)*4
                    for j in range(2): A(f"ds_read_b64_tr_b16 {W(base+2*j, 2)}, v{vT2} offset:{ga*4096 + j*1024}")
            rounds.append(dict(dma=[(srd, vDma, sSrc, (64*r + 4*q)*8192, q*1024) for q in range(4)], reads=rd))
    load_coop(A, rounds, 9, 16384, sLds, sT, hooks={3: lambda: arrive_init(A, vT0, vZ), 22: lambda: code_touch(A, 'L_P_LOADED', 'L_P_END', 13, 14, 1)})
    A.label('L_P_LOADED')
    stamp(A, 1, vT0)
    wait_counter(A, D_H1, 64, vT0, vZ, sC, 0x12)
    A("s_barrier")
    stamp(A, 2, vT0)
    A(f"""v_and_b32 v{vT0}, 31, v0
    v_lshlrev_b32 v{vSt}, 4, v{vT0}
    v_lshrrev_b32 v{vT0}, 5, v0
    v_lshl_add_u32 v{vSt}, v{vT0}, 10, v{vSt}
    s_mul_i32 s{sH}, s{sSUB}, 36864
    s_mul_i32 s{sT}, s{sW}, 9216
    s_add_u32 s{sH}, s{sH}, s{sT}
    s_add_u32 s{sH}, s{sH}, {H1}
    s_mov_b32 s{sLds}, s{sT}
    s_lshl_b32 s{sOut}, s{sSUB}, 5
    s_add_u32 s{sOut}, s{sOut}, s{sCU}
    s_lshl_b32 s{sOut}, s{sOut}, 13
    s_lshl_b32 s{sT}, s{sW}, 11
    s_add_u32 s{sOut}, s{sOut}, s{sT}
    s_mov_b32 s{sN}, 0""")
    vRd = 10
    def dma_h(buf_toggle):
        for i in range(9):
            A(f"s_add_u32 m0, s{sLds}, {i*1024}")
            A(f"s_add_u32 s{sT}, s{sH}, {i*1024}")
            A(f"buffer_load_dwordx4 v{vL16}, {WS}, s{sT} offen sc1 lds")
        A(f"s_add_u32 s{sH}, s{sH}, {2*36864}")
    dma_h(0)
    A(f"v_mov_b32 v{vRd}, v{vL16}")
    A(f"s_waitcnt vmcnt(0)")
    ACC = {0: 32, 1: 48, 2: 64}
    BF = [16, 20, 24, 28]
    A.label('L_P_LOOP')
    A("s_waitcnt vmcnt(6)")
    A("s_barrier")
    A(f"s_xor_b32 s{sLds}, s{sLds}, 0x10000")
    for i in range(3):
        A(f"ds_read_b128 {v(BF[i],4)}, v{vRd} offset:{i*1024}")
    for ks in range(36):
        if ks + 3 < 36:
            A(f"ds_read_b128 {v(BF[(ks+3)%4],4)}, v{vRd} offset:{(ks+3)*1024}")
        rem = min(3, 35 - ks)
        A(f"s_waitcnt lgkmcnt({rem})")
        b = v(BF[ks % 4], 4)
        for m_ in range(3):
            w = W((m_*36 + ks)*4, 4)
            d = v(ACC[m_], 16)
            c = '0' if ks == 0 else d
            if m_ == 1: A(f"v_mfma_f32_32x32x16_bf16 {d}, {b}, {w}, {c}")
            else:       A(f"v_mfma_f32_32x32x16_bf16 {d}, {w}, {b}, {c}")
        if 12 <= ks < 30 and ks % 2 == 0:
            i = (ks - 12) // 2
            A(f"s_add_u32 m0, s{sLds}, {i*1024}")
            A(f"s_add_u32 s{sT}, s{sH}, {i*1024}")
            A(f"buffer_load_dwordx4 v{vL16}, {WS}, s{sT} offen sc1 lds")
            if i == 8: A(f"s_add_u32 s{sH}, s{sH}, {2*36864}")
        if ks == 11:
            A(f"""s_waitcnt vmcnt(0)
            v_mov_b32 v{vT0}, s{sN}
            buffer_store_dword v{vT0}, v{vZ}, {WS}, s{sFl} offen sc1""")
    A(f"v_xor_b32 v{vRd}, 0x10000, v{vRd}")
    A.nop(9)
    def pack_qk(acc, tmp):
        for x in range(8):
            A(f"v_cvt_pk_bf16_f32 v{tmp+rotl3(x)}, v{acc+x}, v{acc+8+x}")
    pack_qk(ACC[0], 16)
    A(f"s_add_u32 s{sT}, s{sOut}, {KB}")
    A(f"buffer_store_dwordx4 {v(16,4)}, v{vSt}, {WS}, s{sT} offen sc1")
    A(f"buffer_store_dwordx4 {v(20,4)}, v{vSt}, {WS}, s{sT} offen offset:512 sc1")
    for y in range(8):
        A(f"v_cvt_pk_bf16_f32 v{24+y}, v{ACC[1]+2*y}, v{ACC[1]+2*y+1}")
    A(f"s_add_u32 s{sT}, s{sOut}, {VB}")
    A(f"buffer_store_dwordx4 {v(24,4)}, v{vL16}, {WS}, s{sT} offen sc1")
    A(f"buffer_store_dwordx4 {v(28,4)}, v{vL16}, {WS}, s{sT} offen offset:1024 sc1")
    pack_qk(ACC[2], ACC[0])
    A(f"s_add_u32 s{sT}, s{sOut}, {QB}")
    A(f"buffer_store_dwordx4 {v(ACC[0],4)}, v{vSt}, {WS}, s{sT} offen sc1")
    A(f"buffer_store_dwordx4 {v(ACC[0]+4,4)}, v{vSt}, {WS}, s{sT} offen offset:512 sc1")
    A(f"""s_add_u32 s{sOut}, s{sOut}, {64*8192}
    s_add_u32 s{sN}, s{sN}, 1
    s_cmp_lt_u32 s{sN}, 32
    s_cbranch_scc1 L_P_LOOP
    s_waitcnt vmcnt(0)
    v_mov_b32 v{vT0}, s{sN}
    buffer_store_dword v{vT0}, v{vZ}, {WS}, s{sFl} offen sc1""")
    stamp(A, 3, vT0)
    A("s_endpgm")
    A.label('L_P_END')

def arrive_init(A, vt, vz, n=1, cond=None):
    l = A.newlab('AI')
    A(f"""{cond or f's_cmp_lg_u32 s{sW}, 0'}
    s_cbranch_scc1 {l}
    v_mov_b32 v{vt}, {n}
    s_mov_b64 exec, 1
    buffer_atomic_add v{vt}, v{vz}, {DBG}, 0 offen offset:{D_INIT}
    s_mov_b64 exec, -1""")
    A.label(l)
```

```python
from common import *

def red8(A, x, t):
    A.nop(2)
    A(f"v_add_f32_dpp v{t}, v{x}, v{x} quad_perm:[1,0,3,2] row_mask:0xf bank_mask:0xf")
    A.nop(2)
    A(f"v_add_f32_dpp v{x}, v{t}, v{t} quad_perm:[2,3,0,1] row_mask:0xf bank_mask:0xf")
    A.nop(2)
    A(f"v_add_f32_dpp v{t}, v{x}, v{x} row_half_mirror row_mask:0xf bank_mask:0xf")
    A(f"v_mov_b32 v{x}, v{t}")

def gen_mod_ln1(A):
    sAI, sT, sC, sT2 = 70, 71, 72, 73
    import common
    def pst(i):
        if common.PST: stamp(A, i, 250)
    vZ, vTid, vT0, vT1, vT2, vXo = 1, 2, 3, 4, 5, 6
    mk_srd(A, SR0, PX, 2048*1152); mk_srd(A, SR1, PC, 1152); mk_srd(A, SR2, PWM, 576*6912)
    A(f"""v_mov_b32 v{vZ}, 0
    s_lshl_b32 s{sAI}, s{sSUB}, 5
    s_add_u32 s{sAI}, s{sAI}, s{sCU}
    s_lshl_b32 s{sT}, s{sW}, 6
    v_add_u32 v{vTid}, s{sT}, v0""")
    VC = 8
    VW = 12
    VX = 84
    A(f"""v_lshlrev_b32 v{vT0}, 1, v{vTid}
    buffer_load_ushort v{VC}, v{vT0}, {s(SR1,4)}, 0 offen
    buffer_load_ushort v{VC+1}, v{vT0}, {s(SR1,4)}, 0 offen offset:512
    buffer_load_ushort v{VC+2}, v{vT0}, {s(SR1,4)}, 0 offen offset:1024""")
    lskip = A.newlab('MODSKIP1')
    A(f"""s_cmp_ge_u32 s{sAI}, 54
    s_cbranch_scc1 {lskip}
    v_lshrrev_b32 v{vT0}, 3, v{vTid}
    v_mul_u32_u24 v{vT0}, {18*6912}, v{vT0}
    v_and_b32 v{vT1}, 7, v{vTid}
    v_lshl_add_u32 v{vT0}, v{vT1}, 4, v{vT0}
    s_lshl_b32 s{sT}, s{sAI}, 7""")
    for i in range(18):
        A(f"buffer_load_dwordx4 {v(VW+4*i,4)}, v{vT0}, {s(SR2,4)}, s{sT} offen")
        if i < 17: A(f"s_add_u32 s{sT}, s{sT}, 6912")
    A.label(lskip)
    A(f"""v_lshrrev_b32 v{vT0}, 3, v{vTid}
    v_mul_u32_u24 v{vXo}, 1152, v{vT0}
    v_and_b32 v{vT1}, 7, v0
    v_lshl_add_u32 v{vXo}, v{vT1}, 4, v{vXo}
    s_mul_i32 s{sT}, s{sAI}, {32*1152}""")
    for i in range(9):
        A(f"buffer_load_dwordx4 {v(VX+4*i,4)}, v{vXo}, {s(SR0,4)}, s{sT} offen offset:{128*i}")
    lskip2 = A.newlab('MODSKIP2')
    A(f"""s_cmp_ge_u32 s{sAI}, 54
    s_cbranch_scc1 {lskip2}""")
    A("s_waitcnt vmcnt(27)")
    pst(4)
    for i in range(3):
        x = VC + i
        A(f"""v_lshlrev_b32 v{x}, 16, v{x}
        v_mul_f32 v{vT0}, 0xbfb8aa3b, v{x}
        v_exp_f32 v{vT0}, v{vT0}
        s_nop 0
        v_add_f32 v{vT0}, 1.0, v{vT0}
        v_rcp_f32 v{vT0}, v{vT0}
        s_nop 0
        v_mul_f32 v{x}, v{x}, v{vT0}""")
        rnd1(A, x, x)
    A(f"""v_lshlrev_b32 v{vT0}, 2, v{vTid}
    ds_write_b32 v{vT0}, v{VC}
    ds_write_b32 v{vT0}, v{VC+1} offset:1024
    ds_write_b32 v{vT0}, v{VC+2} offset:2048
    s_waitcnt lgkmcnt(0)
    s_barrier
    v_lshrrev_b32 v{vT0}, 3, v{vTid}
    v_mul_u32_u24 v{vT0}, 72, v{vT0}""")
    VS = 120
    for i in range(9):
        A(f"ds_read_b64 {v(VS+2*i,2)}, v{vT0} offset:{8*i}")
    VA = 140
    for j in range(8): A(f"v_mov_b32 v{VA+j}, 0")
    A("s_waitcnt lgkmcnt(0)")
    for i in range(18):
        A(f"s_waitcnt vmcnt({9+17-i})")
        for d in range(4):
            r = VW + 4*i + d
            A(f"""v_lshlrev_b32 v{vT1}, 16, v{r}
            v_and_b32 v{vT2}, 0xffff0000, v{r}
            v_fmac_f32 v{VA+2*d}, v{VS+i}, v{vT1}
            v_fmac_f32 v{VA+2*d+1}, v{VS+i}, v{vT2}""")
    pst(5)
    A(f"""v_lshlrev_b32 v{vT0}, 5, v{vTid}
    ds_write_b128 v{vT0}, {v(VA,4)} offset:4096
    ds_write_b128 v{vT0}, {v(VA+4,4)} offset:4112
    s_waitcnt lgkmcnt(0)
    s_barrier""")
    lw = A.newlab('MODW')
    A(f"""s_cmp_lg_u32 s{sW}, 0
    s_cbranch_scc1 {lw}
    v_lshlrev_b32 v{vT0}, 2, v0""")
    for i in range(32):
        A(f"ds_read_b32 v{VW+i}, v{vT0} offset:{4096+256*i}")
        if i == 14 or i == 29: A("s_waitcnt lgkmcnt(0)")
    A("s_waitcnt lgkmcnt(0)")
    for st in (16, 8, 4, 2, 1):
        for i in range(st): A(f"v_add_f32 v{VW+i}, v{VW+i}, v{VW+i+st}")
    A(f"""v_cvt_pk_bf16_f32 v{VW}, v{VW}, v{VW}
    v_lshlrev_b32 v{vT0}, 1, v0
    s_lshl_b32 s{sT}, s{sAI}, 7
    s_add_u32 s{sT}, s{sT}, {MOD}
    buffer_store_short v{VW}, v{vT0}, {WS}, s{sT} offen sc1
    s_waitcnt vmcnt(0)
    v_mov_b32 v{vT0}, 1
    s_mov_b64 exec, 1
    buffer_atomic_add v{vT0}, v{vZ}, {DBG}, 0 offen offset:{D_MOD}
    s_mov_b64 exec, -1""")
    A.label(lw)
    A.label(lskip2)
    pst(6)
    VY = 12
    A("s_waitcnt vmcnt(0)")
    for r in range(36):
        A(f"""v_lshlrev_b32 v{VY+2*r}, 16, v{VX+r}
        v_and_b32 v{VY+2*r+1}, 0xffff0000, v{VX+r}""")
    ln_core(A, VY, 72, 84, red8)
    pst(7)
    wait_counter(A, D_MOD, 54, vT0, vZ, sC, 0x21)
    VSA, VCA = 84, 120
    pst(8)
    A(f"""v_and_b32 v{vT0}, 7, v0
    v_lshlrev_b32 v{vT0}, 4, v{vT0}
    s_mov_b32 s{sT}, {MOD}""")
    for i in range(9):
        A(f"buffer_load_dwordx4 {v(VCA+4*i,4)}, v{vT0}, {WS}, s{sT} offen offset:{1152+128*i} sc1")
        A(f"buffer_load_dwordx4 {v(VSA+4*i,4)}, v{vT0}, {WS}, s{sT} offen offset:{128*i} sc1")
    A(f"""v_and_b32 v{vT0}, 7, v0
    v_lshlrev_b32 v{vXo}, 9, v{vT0}
    v_lshrrev_b32 v{vT0}, 3, v{vTid}
    v_lshl_add_u32 v{vXo}, v{vT0}, 4, v{vXo}
    s_mul_i32 s{sT}, s{sAI}, 36864
    s_add_u32 s{sT}, s{sT}, {H1}""")
    T = 160
    for i in range(9):
        A(f"s_waitcnt vmcnt({16-2*i+i})")
        for d in range(4):
            modulate(A, VY+8*i+2*d, VCA+4*i+d, VSA+4*i+d, VSA+4*i+d, T)
        A(f"buffer_store_dwordx4 {v(VSA+4*i,4)}, v{vXo}, {WS}, s{sT} offen sc1")
        A(f"s_add_u32 s{sT}, s{sT}, 4096")
    pst(9)
    A(f"""s_waitcnt vmcnt(0)
    s_barrier""")
    pst(10)
    l = A.newlab('H1A')
    A(f"""s_cmp_lg_u32 s{sW}, 0
    s_cbranch_scc1 {l}
    v_mov_b32 v{vT0}, 1
    s_mov_b64 exec, 1
    buffer_atomic_add v{vT0}, v{vZ}, {DBG}, 0 offen offset:{D_H1}
    s_mov_b64 exec, -1""")
    A.label(l)

def modulate(A, y, c, sh, dst, T):
    A(f"""v_lshlrev_b32 v{T}, 16, v{c}
    v_and_b32 v{T+1}, 0xffff0000, v{c}
    v_add_f32 v{T}, 1.0, v{T}
    v_add_f32 v{T+1}, 1.0, v{T+1}""")
    rnd2(A, T, T+1, T, T+1, T+2)
    A(f"""v_mul_f32 v{T}, v{T}, v{y}
    v_mul_f32 v{T+1}, v{T+1}, v{y+1}""")
    rnd2(A, T, T+1, T, T+1, T+2)
    A(f"""v_lshlrev_b32 v{T+2}, 16, v{sh}
    v_and_b32 v{T+3}, 0xffff0000, v{sh}
    v_add_f32 v{T}, v{T}, v{T+2}
    v_add_f32 v{T+1}, v{T+1}, v{T+3}
    v_cvt_pk_bf16_f32 v{dst}, v{T}, v{T+1}""")

def ln_core(A, VY, n, T, red):
    S, Q, M, D = T, T+1, T+2, T+3
    A(f"v_add_f32 v{S}, v{VY}, v{VY+1}")
    for i in range(2, n): A(f"v_add_f32 v{S}, v{S}, v{VY+i}")
    red(A, S, T+4)
    A(f"v_mul_f32 v{M}, 0x3ae38e39, v{S}")
    A(f"v_mov_b32 v{Q}, 0")
    for i in range(n):
        A(f"""v_sub_f32 v{D}, v{VY+i}, v{M}
        v_fmac_f32 v{Q}, v{D}, v{D}""")
    red(A, Q, T+4)
    A(f"v_mul_f32 v{Q}, 0x3ae38e39, v{Q}")
    rnd2(A, M, Q, M, Q, T+4)
    A(f"v_add_f32 v{Q}, 0x3727c5ac, v{Q}")
    rnd1(A, Q, Q)
    A(f"""v_sqrt_f32 v{Q}, v{Q}
    s_nop 0""")
    rnd1(A, Q, Q)
    A(f"""v_rcp_f32 v{Q}, v{Q}
    s_nop 0""")
    for i in range(0, n - 1, 2):
        A(f"""v_sub_f32 v{VY+i}, v{VY+i}, v{M}
        v_sub_f32 v{VY+i+1}, v{VY+i+1}, v{M}""")
        rnd2(A, VY+i, VY+i+1, VY+i, VY+i+1, D)
        A(f"""v_mul_f32 v{VY+i}, v{VY+i}, v{Q}
        v_mul_f32 v{VY+i+1}, v{VY+i+1}, v{Q}""")
        rnd2(A, VY+i, VY+i+1, VY+i, VY+i+1, D)
    if n % 2:
        i = n - 1
        A(f"v_sub_f32 v{VY+i}, v{VY+i}, v{M}")
        rnd1(A, VY+i, VY+i)
        A(f"v_mul_f32 v{VY+i}, v{VY+i}, v{Q}")
        rnd1(A, VY+i, VY+i)
```

```python
from common import *
import common
from role_p import arrive_init

L_MEM = 0; L_Q = 9216; L_K = 11264; L_S = 13312; L_SEL = 14464; L_DUM = 15488; L_W = 16384
L_O = L_Q
SC2 = 0x3e0293ee
MSK = "s[16:17]"

def gen_T(A):
    A.label('L_ROLE_T')
    W = WRegs(80)
    mk_srd(A, SR0, PWQ, 576*8192); mk_srd(A, SR1, PWK, 576*8192); mk_srd(A, SR2, PWV, 576*8192)
    mk_srd(A, SR3, PWO, 4096*1152); mk_srd(A, SR4, PMEM0, 9216)
    sLds, sT, sC, sS, sUnit = 70, 71, 72, 73, 74
    sB = [75, 76, 77, 78]; sB8 = 79; sWo = 80
    sH1S, sH1L, sM2R, sM2N, sM2P = 81, 82, 83, 84, 85
    sKV, sEX, sFT, sT2, sRed, sT3, sSC, sU7, sH7, sRZ, sR8 = 86, 87, 88, 89, 90, 91, 92, 93, 94, 95, 69
    vIDX, vAF, vL16, vBF, vWL, vFL, vDM, vQW, vKW, vSW, vSR, vKX, vVX, vH1a, vH1b, vAM = range(16)
    RA0, RA1, B0, B1, B2, ST0, KX, MX, AQ, AK, AV = 16, 20, 24, 28, 32, 36, 44, 52, 56, 64, 72
    vPub, vC8, X = 32, 33, 34
    lane = 60; t0, t1, t2, vZ = 61, 62, 63, 64
    vDma, vDmo, vDm8, vTr, vDc8 = 65, 66, 67, 68, 69
    A(f"v_mov_b32 v{lane}, v0")
    A("s_mov_b32 s16, 0x00ff00ff\n s_mov_b32 s17, 0x00ff00ff")
    def bits(dst, spec, acc=False, src=lane, tmp=t0):
        first = not acc
        for (lo, n, sh) in spec:
            A(f"v_bfe_u32 v{tmp}, v{src}, {lo}, {n}")
            if first: A(f"v_lshlrev_b32 v{dst}, {sh}, v{tmp}"); first = False
            else: A(f"v_lshl_add_u32 v{dst}, v{tmp}, {sh}, v{dst}")
    vTr2, vT8, vT82 = 70, 71, 72
    bits(vDma, [(4, 1, 17), (5, 1, 13), (0, 4, 4)])
    bits(vDc8, [(5, 1, 15), (4, 1, 13), (0, 4, 4)])
    bits(t1, [(4, 2, 0)])
    A(f"v_mul_u32_u24 v{vDmo}, 1152, v{t1}")
    bits(vDmo, [(0, 4, 4)], acc=True)
    bits(t1, [(4, 2, 0), (3, 1, 6)])
    A(f"v_mul_u32_u24 v{vDm8}, 1152, v{t1}")
    bits(vDm8, [(0, 3, 4)], acc=True)
    A(f"""s_mul_i32 s{sLds}, s{sW}, 36864
    s_add_u32 s{sLds}, s{sLds}, {L_W}
    s_lshl_b32 s{sB8}, s{sCU}, 8
    s_and_b32 s{sT}, s{sW}, 1
    s_lshl_b32 s{sT}, s{sT}, 20
    s_add_u32 s{sB[0]}, s{sB8}, s{sT}
    s_lshr_b32 s{sT}, s{sW}, 1
    s_lshl_b32 s{sT}, s{sT}, 16
    s_add_u32 s{sB[0]}, s{sB[0]}, s{sT}
    s_lshl_b32 s{sT}, s{sW}, 17
    s_add_u32 s{sB8}, s{sB8}, s{sT}
    s_mul_i32 s{sWo}, s{sCU}, {128*1152}
    s_lshr_b32 s{sT}, s{sW}, 1
    s_mul_i32 s{sT}, s{sT}, {32*1152}
    s_add_u32 s{sWo}, s{sWo}, s{sT}
    s_and_b32 s{sT}, s{sW}, 1
    s_mul_i32 s{sT}, s{sT}, {8*1152}
    s_add_u32 s{sWo}, s{sWo}, s{sT}
    v_lshlrev_b32 v{vL16}, 4, v{lane}
    v_add_u32 v{vWL}, s{sLds}, v{vL16}""")
    bits(t1, [(5, 1, 0)])
    A(f"v_mul_u32_u24 v{vTr}, 36864, v{t1}")
    bits(vTr, [(3, 1, 11), (4, 1, 10), (2, 1, 8), (0, 2, 3)], acc=True)
    A(f"""s_lshl_b32 s{sT}, s{sW}, 5
    s_add_u32 s{sT}, s{sT}, {L_W}
    v_add_u32 v{vT8}, s{sT}, v{vTr}
    v_add_u32 v{vT82}, 73728, v{vT8}
    s_lshl_b32 s{sT}, s{sW}, 5
    v_add_u32 v{vTr}, s{sT}, v{vT8}
    v_add_u32 v{vTr2}, 73728, v{vTr}""")
    LDSR = [('q', 0), ('q', 1), ('q', 2), ('q', 3), ('q', 8), ('o', 0, 0), ('o', 2, 0), ('o', 3, 0)]
    KX4 = [('k', c) for c in range(4)]
    allr = [(m, c) for m in 'kqv' for c in range(9)] + [('o', y, kk) for y in range(4) for kk in range(2)] + [('o', 4)]
    regr = [j for j in allr if j not in LDSR and j not in KX4]
    assert len(regr) == 24
    HOLD = 16 + 32
    HOLD = 32
    locc = [dict() for _ in range(4)]
    def dma_of(j):
        out = []
        for q in range(4):
            if j[0] in 'qkv':
                srd = {'q': SR0, 'k': SR1, 'v': SR2}[j[0]]; c = j[1]
                if c < 8: out.append((srd, vDma, sB[0], (256*(c >> 2) + 32*(c & 3) + 4*(q >> 1) + 2*(q & 1))*8192, q*1024))
                else: out.append((srd, vDc8, sB8, (512 + 2*(q >> 1) + 8*(q & 1))*8192, q*1024))
            elif len(j) == 3: out.append((SR3, vDmo, sWo, (64*j[2] + 16*(q & 1) + 4*(q >> 1))*1152 + j[1]*256, q*1024))
            else: out.append((SR3, vDm8, sWo, (16*(q & 1) + 4*(q >> 1))*1152 + 1024, q*1024))
        return out
    def reads_of(j, dst):
        t8 = (j == ('o', 4))
        return [(dst(tau*8 + 2*y), ((vT8, vT82) if t8 else (vTr, vTr2))[y >> 1], (y & 1)*512 + tau*(128 if t8 else 32)) for tau in range(2) for y in range(4)]
    rounds = []
    HOLDA = 24*16 + 3*16 - 16
    for c in range(4):
        def rd(so, c=c):
            lend = A.newlab('KR')
            for w in range(4):
                ln = A.newlab('KRW')
                if w < 3: A(f"s_cmp_lg_u32 s{sW}, {w}\n s_cbranch_scc1 {ln}")
                dst = (lambda o: v(HOLD + o, 2)) if w == c else (lambda o, b=((w ^ c) - 1)*16: W(b + o, 2))
                for (d, va, imm) in reads_of(('k', c), dst): A(f"ds_read_b64_tr_b16 {d}, v{va} offset:{so+imm}")
                if w < 3: A(f"s_branch {lend}"); A.label(ln)
            A.label(lend)
        rounds.append(dict(dma=dma_of(('k', c)), reads=rd))
        for w in range(4):
            for tau in range(2):
                locc[w][(('k', c), tau)] = ('l', 0*4096 + tau*2048) if w == c else ('r', W(((w ^ c) - 1)*16 + tau*8, 8))
    for n, j in enumerate(regr):
        b = 48 + n*16
        rounds.append(dict(dma=dma_of(j), reads=reads_of(j, lambda o, b=b: W(b + o, 2))))
        for w in range(4):
            for tau in range(2): locc[w][(j, tau)] = ('r', W(b + tau*8, 8))
    assert len(rounds) == 28 and (len(rounds) - 1) % 9 == 0
    def wb(base):
        def f(so):
            for q in range(4): A(f"ds_write_b128 v{vWL}, {v(base+4*q,4)} offset:{so+q*1024}")
        return f
    rounds[27]['post'] = wb(HOLD)
    for n, j in enumerate(LDSR):
        base = 16 if n % 2 == 0 else 32
        rounds.append(dict(dma=dma_of(j), reads=reads_of(j, lambda o, base=base: v(base + o, 2)), post=wb(base)))
        for w in range(4):
            for tau in range(2): locc[w][(j, tau)] = ('l', (n+1)*4096 + tau*2048)

    vPi = 73
    bits(vAF, [(4, 2, 8), (1, 1, 7), (2, 2, 5), (0, 1, 4)])
    bits(vPi, [(4, 2, 5), (0, 3, 2)])
    A(f"""v_mov_b32 v{vZ}, 0
    s_lshl_b32 s{sUnit}, s{sW}, 5
    s_add_u32 s{sUnit}, s{sUnit}, s{sCU}
    s_cmp_lt_u32 s{sUnit}, 72
    s_cselect_b32 s{sRed}, 1, 0
    s_lshl_b32 s{sH7}, s{sCU}, 7
    s_lshl_b32 s{sU7}, s{sUnit}, 7
    s_add_u32 s{sFT}, s{sH7}, {FT}
    s_lshl_b32 s{sH1L}, s{sUnit}, 12
    s_add_u32 s{sH1L}, s{sH1L}, {P1}
    buffer_store_dword v{vZ}, v{vZ}, {WS}, s{sFT} offen sc1
    s_cmp_eq_u32 s{sRed}, 0
    s_cbranch_scc1 L_T_NOINIT""")
    for q in range(4): A(f"v_mov_b32 v{16+q}, -1")
    for q in range(4):
        A(f"buffer_store_dwordx4 {v(16,4)}, v{vL16}, {WS}, s{sH1L} offen offset:{q*1024}")
    A(f"""s_cmp_ge_u32 s{sUnit}, 64
    s_cbranch_scc1 L_T_M0B""")
    bits(t1, [(4, 1, 0)])
    A(f"v_mul_u32_u24 v{t1}, 1152, v{t1}")
    bits(t1, [(5, 1, 8), (0, 3, 1)], acc=True)
    A(f"""s_bfe_u32 s{sT}, s{sUnit}, 0x20001
    s_mul_i32 s{sT}, s{sT}, 2304
    s_bfe_u32 s{sT2}, s{sUnit}, 0x20003
    s_lshl_b32 s{sT2}, s{sT2}, 6
    s_add_u32 s{sT}, s{sT}, s{sT2}
    s_bfe_u32 s{sT2}, s{sUnit}, 0x10005
    s_lshl_b32 s{sT2}, s{sT2}, 9
    s_add_u32 s{sT}, s{sT}, s{sT2}
    s_and_b32 s{sT2}, s{sUnit}, 1
    s_lshl_b32 s{sT2}, s{sT2}, 4
    s_add_u32 s{sT}, s{sT}, s{sT2}
    buffer_load_ushort v{t2}, v{t1}, {s(SR4,4)}, s{sT} offen
    buffer_load_ushort v{t0}, v{t1}, {s(SR4,4)}, s{sT} offen offset:32
    s_branch L_T_M0C""")
    A.label('L_T_M0B')
    bits(t1, [(2, 1, 1), (4, 1, 0)])
    A(f"v_mul_u32_u24 v{t1}, 1152, v{t1}")
    bits(t1, [(0, 2, 3), (5, 1, 2)], acc=True)
    A(f"""s_bfe_u32 s{sT}, s{sUnit}, 0x20001
    s_lshl_b32 s{sT}, s{sT}, 5
    s_and_b32 s{sT2}, s{sUnit}, 1
    s_mul_i32 s{sT2}, s{sT2}, 4608
    s_add_u32 s{sT}, s{sT}, s{sT2}
    buffer_load_dword v{t2}, v{t1}, {s(SR4,4)}, s{sT} offen offset:1024
    v_mov_b32 v{t0}, 0""")
    A.label('L_T_M0C')
    A(f"""s_mov_b64 exec, {MSK}
    s_add_u32 s{sT}, s{sU7}, {M2+9216}
    buffer_store_dword v16, v{vPi}, {WS}, s{sT} offen
    s_add_u32 s{sT}, s{sU7}, {M2+18432}
    buffer_store_dword v16, v{vPi}, {WS}, s{sT} offen
    s_mov_b64 exec, -1""")
    A.label('L_T_NOINIT')
    def hook0():
        A(f"""s_cmp_eq_u32 s{sRed}, 0
        s_cbranch_scc1 L_T_HK0
        v_lshl_add_u32 v{t2}, v{t0}, 16, v{t2}
        s_mov_b64 exec, {MSK}
        s_add_u32 s{sT}, s{sU7}, {M2}
        buffer_store_dword v{t2}, v{vPi}, {WS}, s{sT} offen
        s_mov_b64 exec, -1""")
        A.label('L_T_HK0')
    load_coop(A, rounds, 9, 4096, sLds, sT, hooks={0: hook0, 11: lambda: arrive_init(A, t0, vZ, cond=f"s_cmp_eq_u32 s{sRed}, 0")})
    stamp(A, 1, t0)
    if common.TLOAD: A("s_endpgm")

    A(f"""v_bfe_u32 v{t0}, v{lane}, 1, 1
    v_mul_u32_u24 v{t0}, 0xAAAA, v{t0}
    v_add_u32 v{vIDX}, 0x4444, v{t0}
    s_lshl_b32 s{sT}, s{sW}, 9""")
    bits(vBF, [(4, 2, 7), (0, 3, 4)])
    bits(vQW, [(2, 2, 7), (4, 2, 5), (0, 2, 2)])
    A(f"v_add_u32 v{vQW}, s{sT}, v{vQW}")
    A(f"v_add_u32 v{vQW}, {L_Q}, v{vQW}")
    bits(vKW, [(3, 1, 8), (0, 1, 7), (4, 2, 5), (1, 2, 2)])
    A(f"v_add_u32 v{vKW}, s{sT}, v{vKW}")
    A(f"v_add_u32 v{vKW}, {L_K}, v{vKW}")
    bits(t1, [(4, 2, 0)])
    A(f"v_mul_u32_u24 v{vSW}, 288, v{t1}")
    bits(vSW, [(0, 3, 2)], acc=True)
    A(f"""s_lshl_b32 s{sT}, s{sW}, 5
    s_add_u32 s{sT}, s{sT}, {L_S}
    v_add_u32 v{vSW}, s{sT}, v{vSW}""")
    bits(t1, [(0, 3, 0)])
    A(f"v_mul_u32_u24 v{vSR}, 144, v{t1}")
    bits(vSR, [(4, 2, 5)], acc=True)
    bits(vKX, [(3, 1, 12), (4, 2, 9), (2, 1, 7), (0, 2, 4)])
    bits(vVX, [(4, 2, 9), (0, 4, 4)])
    A(f"""s_lshl_b32 s{sT}, s{sW}, 11
    s_add_u32 s{sT}, s{sT}, {VB-KB}
    v_add_u32 v{vVX}, s{sT}, v{vVX}""")
    bits(vH1a, [(3, 3, 12), (0, 3, 4)])
    A(f"""s_lshl_b32 s{sT}, s{sW}, 15
    v_add_u32 v{vH1a}, s{sT}, v{vH1a}""")
    bits(vH1b, [(5, 1, 12), (0, 5, 2)])
    A(f"""s_lshl_b32 s{sT}, s{sW}, 13
    s_add_u32 s{sT}, s{sT}, {64*4096}
    v_add_u32 v{vH1b}, s{sT}, v{vH1b}""")
    bits(vAM, [(2, 2, 8), (4, 2, 6), (0, 1, 5), (1, 1, 4)])
    A(f"""v_bfe_u32 v{t0}, v{lane}, 2, 1
    v_lshlrev_b32 v{t0}, 4, v{t0}
    v_mov_b32 v{t1}, 0x3f80
    v_lshlrev_b32 v{t1}, v{t0}, v{t1}
    v_and_b32 v{t0}, 1, v{lane}
    v_bfe_u32 v{t2}, v{lane}, 3, 1
    v_lshl_add_u32 v{t0}, v{t2}, 1, v{t0}""")
    for q in range(4):
        A(f"""v_cmp_eq_u32 vcc, {q}, v{t0}
        s_nop 1
        v_cndmask_b32 v{16+q}, 0, v{t1}, vcc""")
    A(f"ds_write_b128 v{vL16}, {v(16,4)} offset:{L_SEL}")
    A(f"""s_add_u32 s{sH1S}, s{sH7}, {P1}
    s_lshl_b32 s{sH1L}, s{sCU}, 12
    s_add_u32 s{sH1L}, s{sH1L}, {P1}
    s_add_u32 s{sRZ}, s{sH1L}, 0x80000
    s_mul_i32 s{sR8}, s{sCU}, {-3072 & 0xffffffff}
    s_add_u32 s{sR8}, s{sR8}, {64*4096}
    s_mov_b32 s{sM2R}, {M2}
    s_mov_b32 s{sM2N}, {M2+9216}
    s_mov_b32 s{sM2P}, {M2+18432}
    s_lshl_b32 s{sKV}, s{sCU}, 13
    s_add_u32 s{sKV}, s{sKV}, {KB}
    s_lshl_b32 s{sEX}, s{sCU}, 12
    s_add_u32 s{sEX}, s{sEX}, {KM - 32*4096}
    s_mov_b32 s{sSC}, {SC2}
    s_mov_b32 s{sS}, 0""")
    wait_counter(A, D_INIT, N_INIT, t0, vZ, sC, 0x01)
    def flag_load(skap):
        A(f"""s_lshl_b32 s{sT3}, s{skap}, 12
        s_add_u32 s{sT3}, s{sT3}, s{sH7}
        buffer_load_dword v{vFL}, v{vL16}, {WS}, s{sT3} offen offset:{FP} sc1""")
    def wait_flags(skap, sneed, err, first_loaded):
        l0 = A.newlab('TF'); l1 = A.newlab('TFD')
        if first_loaded:
            A(f"v_cmp_gt_u32 vcc, s{sneed}, v{vFL}\n s_cbranch_vccz {l1}")
        A(f"s_mov_b32 s{sC}, {SPIN}")
        A.label(l0)
        flag_load(skap)
        A(f"""s_waitcnt vmcnt(0)
        v_cmp_gt_u32 vcc, s{sneed}, v{vFL}
        s_cbranch_vccz {l1}
        s_sub_u32 s{sC}, s{sC}, 1
        s_cmp_lg_u32 s{sC}, 0
        s_cbranch_scc1 {l0}
        s_mov_b32 s{sERR}, {err}
        s_branch L_ABORT""")
        A.label(l1)
    def touch(sbase_off):
        A(f"""v_lshlrev_b32 v{vDM}, {common.PFSH}, v{vL16}
        s_mov_b32 m0, {L_DUM}
        s_add_u32 s{sT}, s{sKV}, {sbase_off}""")
        step = 1024 << common.PFSH
        for base in (0, VB - KB):
            for o in range(0, 8192, step):
                A(f"s_add_u32 s{sT2}, s{sT}, {base+o}")
                A(f"buffer_load_dword v{vDM}, {WS}, s{sT2} offen sc1 lds")
    A(f"""s_cmp_lg_u32 s{sW}, 3
    s_cbranch_scc1 L_T_W0""")
    A(f"s_mov_b64 exec, 15\n s_mov_b32 s{sT}, 0\n s_mov_b32 s{sT2}, 1")
    wait_flags(sT, sT2, 0x02, False)
    A(f"s_mov_b32 s{sT}, 1\n s_mov_b32 s{sT2}, 1")
    wait_flags(sT, sT2, 0x02, False)
    A("s_mov_b64 exec, -1")
    touch(0); touch(32*8192)
    A("s_waitcnt vmcnt(0)")
    A.label('L_T_W0')
    A("s_waitcnt lgkmcnt(0)")
    A("s_barrier")
    stamp(A, 2, t0)
    for w in range(1, 4):
        A(f"s_cmp_eq_u32 s{sW}, {w}\n s_cbranch_scc1 L_T_PRE{w}")

    TSP = [4,6,8,10,12,14,18,20,22,24,26,28,30,32,34]
    def ts(i):
        if common.DEV and common.TS: A(f"{'s_memrealtime' if common.TSR else 's_memtime'} s[{TSP[i]}:{TSP[i]+1}]")

    def gen_loop(w):
        L = lambda n: f"L_T_{n}{w}"
        def tsdump():
            if not (common.DEV and common.TS): return
            A(f"""s_cmp_lg_u32 s{sS}, 41
            s_cbranch_scc1 {L('NODUMP')}
            s_waitcnt lgkmcnt(0)
            s_lshl_b32 s96, s{sCU}, 8
            s_add_u32 s96, s96, {STAMP2 + w*64}
            v_mov_b32 v32, 0""")
            for i in range(15):
                A(f"v_mov_b32 v35, s{TSP[i]}")
                A(f"buffer_store_dword v35, v32, {WS}, s96 offen offset:{4*i}")
                A("s_nop 1")
            A.label(L('NODUMP'))
        D = Cnt(A, 'lgkmcnt', 15)
        V = Cnt(A, 'vmcnt', 63)
        stg = {}
        def wread1(key, dst, half):
            kind, off = loc[key]; assert kind == 'l'
            D.op(f"ds_read_b128 {v(dst+4*half,4)}, v{vWL} offset:{off+1024*half}", ('w', key))
            stg[key] = dst
        def wread(key, dst):
            wread1(key, dst, 0); wread1(key, dst, 1)
        def smf(acc, areg, key):
            kind, x = loc[key]
            if kind == 'l':
                D.need(('w', key)); b = v(stg[key], 8)
            else: b = x
            A(f"v_smfmac_f32_16x16x64_bf16 {v(acc,4)}, {v(areg,4)}, {b}, v{vIDX}")
        def zero(r, n):
            for i in range(0, n, 2): A(f"v_mov_b64 {v(r+i,2)}, 0")
        def pkadd(r):
            A(f"v_pk_add_f32 {v(r,2)}, {v(r,2)}, {v(r+2,2)}")
        def delay(n):
            if n: A(f"s_sleep {n}")
        chunk = lambda i: 8 if i == 8 else (w ^ (i >> 1)) + 4*(i & 1)
        loc = locc[w]
        q_, k_, v_ = (lambda i, t: (('q', chunk(i)), t)), (lambda i, t: (('k', chunk(i)), t)), (lambda i, t: (('v', chunk(i)), t))
        o_ = lambda t, kk: ((('o', t >> 1, kk), t & 1) if t < 8 else (('o', 4), kk))
        chunk = lambda i: 8 if i == 8 else (w ^ (i >> 1)) + 4*(i & 1)
        def aread(i, dst):
            D.op(f"ds_read_b128 {v(dst,4)}, v{vL16} offset:{L_MEM+1024*chunk(i)}", ('a', i))
        def vv(i, reg):
            D.need(('a', i)); smf(AV, reg, v_(i, 0)); smf(AV+4, reg, v_(i, 1))
        def hk1():
            wread(q_(0, 1), ST0); wread(k_(0, 0), KX)
            A(f"v_lshrrev_b32 v{X}, 2, v{vL16}")
            bits(vC8, [(9, 1, 7), (6, 1, 6), (7, 2, 4), (4, 2, 2)], src=vL16, tmp=vDM)
            zero(AQ, 8)
        def hk2():
            wread(q_(0, 0), B0); wread(k_(0, 1), AV)
            zero(AK, 8)

        C = common
        def add2(r):
            A(f"v_add_f32 v{r}, v{r}, v{r+2}\n v_add_f32 v{r+1}, v{r+1}, v{r+3}")
        A.label(L('PRE'))
        if w == 3: A(f"s_add_u32 s{sT3}, s{sH7}, 4096\n s_add_u32 s{sB[1]}, s{sKV}, {32*8192}")
        if w == 2: A(f"v_mov_b32 v{vFL}, 0")
        hk1()
        if w != 1: hk2()
        A.label(L('LOOP'))
        A(f"""s_add_u32 s{sT2}, s{sM2R}, 4096
        s_add_u32 s{sT}, s{sM2R}, 8192
        s_mov_b32 s{sC}, {SPIN}""")
        ts(0)
        C8 = 35
        def ldA(): A(f"buffer_load_dwordx4 {v(RA0,4)}, v{vAM}, {WS}, s{sM2R} offen offset:{w*1024} sc1")
        def ldB():
            A(f"buffer_load_dwordx4 {v(RA1,4)}, v{vAM}, {WS}, s{sT2} offen offset:{w*1024} sc1")
            A(f"buffer_load_dword v{C8}, v{X}, {WS}, s{sT} offen offset:{w*256} sc1")
        to2 = f"s_sub_u32 s{sC}, s{sC}, 1\n s_cmp_eq_u32 s{sC}, 0\n s_cbranch_scc1 L_T_TO2"
        A.label(L('POLL2'))
        ldA(); ldB(); A(to2)
        if w == 1: hk2()
        D.reset()
        A(f"""s_waitcnt vmcnt(2) lgkmcnt(0)
        ds_write_b128 v{vL16}, {v(RA0,4)} offset:{L_MEM+w*1024}
        v_max3_u32 v{vDM}, v{RA0}, v{RA0+1}, v{RA0+2}
        v_max_u32 v{vDM}, v{vDM}, v{RA0+3}
        v_cmp_eq_u32 vcc, -1, v{vDM}""")
        if not C.NOX: A(f"s_cbranch_vccnz {L('POLL2')}")
        ts(1)
        smf(AQ, RA0, q_(0, 0)); smf(AQ+4, RA0, q_(0, 1))
        A(f"s_branch {L('CHK2B')}")
        A.label(L('POLL2B'))
        ldB(); A(to2)
        A.label(L('CHK2B'))
        A(f"""s_waitcnt vmcnt(1)
        ds_write_b128 v{vL16}, {v(RA1,4)} offset:{L_MEM+4096+w*1024}
        v_max3_u32 v{vDM}, v{RA1}, v{RA1+1}, v{RA1+2}
        s_waitcnt vmcnt(0)
        ds_write_b32 v{vC8}, v{C8} offset:{L_MEM+8192+w*256}
        v_max3_u32 v{vDM}, v{vDM}, v{RA1+3}, v{C8}
        v_cmp_eq_u32 vcc, -1, v{vDM}""")
        if not C.NOX: A(f"s_cbranch_vccnz {L('POLL2B')}")
        D.q = ['mw']; V.reset()
        ts(2)
        smf(AK, RA0, k_(0, 0))
        wread1(q_(2, 0), ST0, 0)
        smf(AK+4, RA0, k_(0, 1))
        wread1(q_(2, 0), ST0, 1)
        smf(AQ, RA1, q_(1, 0))
        wread1(q_(2, 1), KX, 0)
        smf(AQ+4, RA1, q_(1, 1))
        D.need('mw')
        A("s_barrier"); ts(3)
        aread(2, B0); aread(4, B1)
        smf(AK, RA1, k_(1, 0))
        wread1(q_(2, 1), KX, 1); wread1(q_(4, 0), AV, 0)
        smf(AK+4, RA1, k_(1, 1))
        wread1(q_(4, 0), AV, 1); aread(6, B2)
        xs = [(AK, B0, k_(2,0)), (AQ, B0, q_(2,0)), (AK+4, B0, k_(2,1)), (AQ+4, B0, q_(2,1)),
              (AK, B1, k_(4,0)), (AQ, B1, q_(4,0)), (AK+4, B1, k_(4,1)), (AQ+4, B1, q_(4,1)),
              (AK, B2, k_(6,0)), (AQ, B2, q_(6,0)), (AK+4, B2, k_(6,1)), (AQ+4, B2, q_(6,1)),
              (AK, RA0, k_(8,0)), (AK+4, RA0, k_(8,1)), (AQ, RA0, q_(8,0)), (AQ+4, RA0, q_(8,1))]
        nxt = {1: (q_(4,1), ST0), 3: (q_(6,0), KX), 5: (q_(6,1), AV), 7: (q_(8,0), ST0), 11: (q_(8,1), AV)}
        pend = []
        for n, (acc, ar, key) in enumerate(xs):
            if n % 4 == 0: D.need(('a', 2 + n//2))
            smf(acc, ar, key)
            if n in nxt: pend += [(nxt[n], 0), (nxt[n], 1)]
            if n == 0: aread(8, RA0)
            elif pend:
                (k_x, d_x), hf = pend.pop(0); wread1(k_x, d_x, hf)
            elif n == 9: aread(3, B0)
            elif n == 10: aread(5, B1)
            elif n == 13: aread(7, B2)
            if n in (9 + w, 12 + w - (w == 3 and 0)) and n < 16 or (w == 3 and n == 15 and False):
                j = 0 if n == 9 + w else 1
                kxo = (w >> 1)*256 + (w & 1)*64 + j*2048
                V.op(f"buffer_load_dwordx4 {v(KX+4*j,4)}, v{vKX}, {WS}, s{sKV} offen offset:{kxo} sc1", 'kx')
        ts(4)
        for i, b in ((3, B0), (5, B1), (7, B2)):
            D.need(('a', i)); smf(AQ, b, q_(i, 0)); smf(AQ+4, b, q_(i, 1))
        zero(AV, 8); zero(ST0, 8)
        add2(AQ); add2(AQ+4)
        A(f"v_cvt_pk_bf16_f32 v{AQ}, v{AQ}, v{AQ+4}")
        A(f"v_cvt_pk_bf16_f32 v{AQ+1}, v{AQ+1}, v{AQ+5}")
        D.op(f"ds_write2_b32 v{vQW}, v{AQ}, v{AQ+1} offset0:0 offset1:4", 'qw')
        for n, (acc, b, key) in enumerate([(AK, B0, k_(3, 0)), (AK+4, B0, k_(3, 1)), (AK, B1, k_(5, 0)), (AK+4, B1, k_(5, 1)), (AK, B2, k_(7, 0))]):
            smf(acc, b, key)
            if n == w and not C.NOEX: V.op(f"buffer_store_dwordx4 {v(MX,4)}, v{vL16}, {WS}, s{sEX} offen offset:{w*1024} sc1")
        D.need('qw')
        A("s_barrier"); ts(5)
        D.op(f"ds_read_b128 {v(AQ,4)}, v{vAF} offset:{L_Q}", 'qa')
        smf(AK+4, B2, k_(7, 1))
        D.op(f"ds_read_b128 {v(AQ+4,4)}, v{vAF} offset:{L_Q+1024}", 'qa')
        vv(3, B0)
        D.op(f"ds_read_b128 {v(B0,4)}, v{vBF} offset:{L_Q+1024}", 'qb')
        vv(5, B1)
        D.op(f"ds_read_b128 {v(B1,4)}, v{vBF} offset:{L_Q+1024+512}", 'qb')
        D.need('qa'); V.need('kx')
        A(f"v_smfmac_f32_16x16x64_bf16 {v(ST0,4)}, {v(AQ,4)}, {v(KX,8)}, v{vIDX}")
        D.op(f"ds_read_b128 {v(AQ,4)}, v{vBF} offset:{L_Q}", 'qb')
        A(f"v_smfmac_f32_16x16x64_bf16 {v(ST0+4,4)}, {v(AQ+4,4)}, {v(KX,8)}, v{vIDX}")
        D.op(f"ds_read_b128 {v(AQ+4,4)}, v{vBF} offset:{L_Q+512}", 'qb')
        add2(AK); add2(AK+4)
        A(f"v_cvt_pk_bf16_f32 v{AK+2}, v{AK}, v{AK+4}")
        A(f"v_cvt_pk_bf16_f32 v{AK+3}, v{AK+1}, v{AK+5}")
        D.op(f"ds_write2_b32 v{vKW}, v{AK+2}, v{AK+3} offset0:0 offset1:4", 'kw')
        pkadd(ST0+4); pkadd(ST0)
        A(f"v_mov_b64 {v(MX,2)}, {v(AK+2,2)}")
        if w == 3: A(f"v_lshlrev_b32 v{vDM}, 3, v{vL16}")
        else: A.nop(1)
        A(f"v_add_f32_dpp v{ST0}, v{ST0+4}, v{ST0} row_ror:8 row_mask:0xf bank_mask:0xf")
        A(f"v_add_f32_dpp v{ST0+1}, v{ST0+5}, v{ST0+1} row_ror:8 row_mask:0xf bank_mask:0xf")
        A(f"s_mov_b64 exec, {MSK}")
        D.op(f"ds_write2_b32 v{vSW}, v{ST0}, v{ST0+1} offset0:0 offset1:36", 'sw')
        A(f"s_mov_b64 exec, -1")
        vx = [lambda: V.op(f"buffer_load_dwordx4 {v(KX,4)}, v{vVX}, {WS}, s{sKV} offen sc1", 'vx'),
              lambda: V.op(f"buffer_load_dwordx4 {v(KX+4,4)}, v{vVX}, {WS}, s{sKV} offen offset:256 sc1", 'vx')]
        def tch(o):
            A(f"s_mov_b32 m0, {L_DUM}\n s_add_u32 s{sT}, s{sB[1]}, {o}")
            V.op(f"buffer_load_dword v{vDM}, {WS}, s{sT} offen sc1 lds")
        def fl3():
            A(f"s_mov_b64 exec, 15")
            V.op(f"buffer_load_dword v{vFL}, v{vL16}, {WS}, s{sT3} offen offset:{FP} sc1")
            A(f"s_mov_b64 exec, -1")
        def fl2():
            if C.NOEX: return
            A(f"s_mov_b64 exec, 1")
            V.op(f"buffer_store_dword v{vFL}, v{vL16}, {WS}, s{sFT} offen sc1")
            A(f"s_mov_b64 exec, -1")
        vm = {(w & 1): vx[0], 2 + (w & 1) + (w >> 1): vx[1]}
        late = {3: [lambda: tch(0), lambda: tch(VB-KB), fl3]}.get(w, [])
        cnt = [0]
        def f(acc, ar, key):
            smf(acc, ar, key)
            if cnt[0] in vm: vm[cnt[0]]()
            cnt[0] += 1
        f(AV, RA0, v_(8, 0)); f(AV+4, RA0, v_(8, 1))
        aread(0, RA0)
        f(AV, RA1, v_(1, 0)); f(AV+4, RA1, v_(1, 1))
        aread(2, RA1)
        f(AV, B2, v_(7, 0))
        D.need('sw', 'qb')
        A("s_barrier"); ts(6)
        D.op(f"ds_read_b128 {v(AK,4)}, v{vAF} offset:{L_K}", 'ka')
        smf(AV+4, B2, v_(7, 1))
        D.op(f"ds_read_b128 {v(AK+4,4)}, v{vAF} offset:{L_K+1024}", 'ka')
        D.need(('a', 0))
        smf(AV, RA0, v_(0, 0))
        D.op(f"ds_read_b128 {v(ST0,4)}, v{vSR} offset:{L_S}", 'sr')
        SM = B2
        zero(SM, 4)
        smf(AV+4, RA0, v_(0, 1))
        D.op(f"ds_read_b128 {v(ST0+4,4)}, v{vSR} offset:{L_S+16}", 'sr')
        D.need(('a', 2))
        smf(AV, RA1, v_(2, 0))
        aread(4, RA0)
        smf(AV+4, RA1, v_(2, 1))
        aread(6, RA1)
        D.need('ka'); ts(7)
        A(f"v_smfmac_f32_16x16x64_bf16 {v(SM,4)}, {v(AK,4)}, {v(AQ,8)}, v{vIDX}")
        if late: late.pop(0)()
        A(f"v_smfmac_f32_16x16x64_bf16 {v(SM,4)}, {v(AK+4,4)}, {v(B0,8)}, v{vIDX}")
        D.need('sr')
        S = ST0
        M_, M2_, Z_, Z2_ = AQ, AQ+1, AQ+2, AQ+3
        A(f"v_max3_f32 v{M_}, v{S}, v{S+1}, v{S+2}")
        A(f"v_max3_f32 v{M2_}, v{S+3}, v{S+4}, v{S+5}")
        A(f"v_max3_f32 v{M_}, v{M_}, v{S+6}, v{S+7}")
        D.need(('a', 4))
        smf(AV, RA0, v_(4, 0))
        if late: late.pop(0)()
        else: A.nop(1)
        smf(AV+4, RA0, v_(4, 1))
        add2(SM)
        A(f"v_max_f32 v{M_}, v{M_}, v{M2_}")
        A(f"v_max3_f32 v{M_}, v{M_}, v{SM}, v{SM+1}")
        A(f"v_mov_b32 v{M2_}, v{M_}")
        D.need(('a', 6))
        smf(AV, RA1, v_(6, 0))
        if late: late.pop(0)()
        A(f"v_permlane16_swap_b32 v{M_}, v{M2_}")
        A(f"v_max_f32 v{M_}, v{M_}, v{M2_}")
        A(f"v_mov_b32 v{M2_}, v{M_}")
        smf(AV+4, RA1, v_(6, 1))
        wread1(o_(0, 0), RA0, 0)
        A(f"v_permlane32_swap_b32 v{M_}, v{M2_}")
        A(f"v_max_f32 v{M_}, v{M_}, v{M2_}")
        A(f"v_mul_f32 v{M_}, s{sSC}, v{M_}")
        wread1(o_(0, 0), RA0, 1)
        vals = [S+i for i in range(8)] + [SM, SM+1]
        for n, r in enumerate(vals):
            A(f"v_fma_f32 v{r}, v{r}, s{sSC}, -v{M_}")
        PX_ = AK; PM_ = AK+4; O0 = B0; O1 = B1; VP = MX+2
        for n, r in enumerate(vals):
            A(f"v_exp_f32 v{r}, v{r}")
        for n in range(4): A(f"v_cvt_pk_bf16_f32 v{PX_+n}, v{S+2*n}, v{S+2*n+1}")
        pkadd(AV); pkadd(AV+4)
        ts(8); V.need('vx'); ts(9)
        A(f"v_mfma_f32_16x16x32_bf16 {v(O0,4)}, {v(KX,4)}, {v(PX_,4)}, 0")
        A(f"v_cvt_pk_bf16_f32 v{PM_}, v{SM}, v{SM+1}")
        A(f"v_mov_b32 v{PM_+1}, 0")
        A(f"v_mfma_f32_16x16x32_bf16 {v(O1,4)}, {v(KX+4,4)}, {v(PX_,4)}, 0")
        A(f"v_cvt_pk_bf16_f32 v{VP}, v{AV}, v{AV+1}")
        A(f"v_cvt_pk_bf16_f32 v{VP+1}, v{AV+4}, v{AV+5}")
        A(f"v_mov_b32 v{PM_+2}, 0")
        A(f"v_mov_b32 v{PM_+3}, v{PM_}")
        A(f"v_mfma_f32_16x16x16_bf16 {v(O0,4)}, {v(VP,2)}, {v(PM_,2)}, {v(O0,4)}")
        A(f"v_add3_u32 v{vDM}, v{vDM}, v{vDM}, v{vDM}" if False else f"v_add_f32 v{Z_}, v{S}, v{S+1}")
        A(f"v_add_f32 v{Z2_}, v{S+2}, v{S+3}")
        A(f"v_mfma_f32_16x16x16_bf16 {v(O1,4)}, {v(VP,2)}, {v(PM_+2,2)}, {v(O1,4)}")
        A(f"v_add_f32 v{Z_}, v{Z_}, v{SM}")
        A(f"v_add_f32 v{Z2_}, v{Z2_}, v{SM+1}")
        A(f"v_add_f32 v{Z_}, v{Z_}, v{S+4}")
        A(f"v_add_f32 v{Z2_}, v{Z2_}, v{S+5}")
        A(f"v_pk_add_f32 {v(Z_,2)}, {v(Z_,2)}, {v(S+6,2)}")
        A(f"v_add_f32 v{Z_}, v{Z_}, v{Z2_}")
        A(f"v_mov_b32 v{Z2_}, v{Z_}")
        A(f"""s_add_u32 s{sEX}, s{sEX}, {32*4096}
        s_cmp_eq_u32 s{sS}, 63""")
        A(f"v_permlane16_swap_b32 v{Z_}, v{Z2_}")
        A(f"v_add_f32 v{Z_}, v{Z_}, v{Z2_}")
        A(f"v_mov_b32 v{Z2_}, v{Z_}")
        A(f"s_cbranch_scc1 {L('DONE')}")
        wread1(o_(1, 0), S, 0)
        A(f"v_permlane32_swap_b32 v{Z_}, v{Z2_}")
        A(f"v_add_f32 v{Z_}, v{Z_}, v{Z2_}")
        A(f"v_rcp_f32 v{Z_}, v{Z_}")
        wread1(o_(1, 0), S, 1)
        for r in range(0, 8, 2): A(f"v_pk_mul_f32 {v(O0+r,2)}, {v(O0+r,2)}, {v(Z_,2)} op_sel_hi:[1,0]")
        for r in range(4): A(f"v_cvt_pk_bf16_f32 v{AQ+4+r}, v{O0+2*r}, v{O0+2*r+1}")
        D.op(f"ds_write_b128 v{vBF}, {v(AQ+4,4)} offset:{L_O+w*512}", 'ow')
        WA = [AK, AK+4, AV, AV+4, 28, 32, 44, 48, 24]
        zero(AK, 16); zero(24, 12); zero(44, 8)
        D.need('ow')
        ts(10); A("s_barrier"); ts(11)
        OA = AQ
        D.op(f"ds_read_b128 {v(OA,4)}, v{vAF} offset:{L_O}", 'oa0')
        D.op(f"ds_read_b128 {v(OA+4,4)}, v{vAF} offset:{L_O+1024}", 'oa1')
        A(f"""s_add_u32 s{sT}, s{sH1S}, {4*32768}
        s_add_u32 s{sT2}, s{sH1L}, {w*32*4096}
        s_and_b32 s{sRZ}, s{sS}, 1
        s_sub_u32 s{sR8}, 0, s{sRZ}
        s_mov_b32 s{sC}, {SPIN}""")
        def post(t, dst, pk=True):
            (pkadd if pk else add2)(WA[t]); A(f"v_cvt_pk_bf16_f32 v{dst}, v{WA[t]}, v{WA[t]+1}\n v_and_or_b32 v{dst}, v{dst}, -2, s{sRZ}")
        PL = [AK, AK+4, AV, AV+4]; RD = RA1
        def ld1():
            for q in range(4):
                A(f"buffer_load_dwordx4 {v(PL[q],4)}, v{vL16}, {WS}, s{sT2} offen offset:{q*1024} sc1")
        if w == 3 and not C.NOEX:
            A(f"s_mov_b64 exec, 1\n v_mov_b32 v{vDM}, s{sS}")
            V.op(f"buffer_store_dword v{vDM}, v{vL16}, {WS}, s{sFT} offen sc1")
            A(f"s_mov_b64 exec, -1")
        D.need('oa0')
        smf(WA[0], OA, o_(0, 0)); wread1(o_(4, 0), RA0, 0)
        smf(WA[1], OA, o_(1, 0)); wread1(o_(4, 0), RA0, 1)
        smf(WA[2], OA, o_(2, 0)); wread1(o_(5, 0), S, 0)
        smf(WA[3], OA, o_(3, 0)); wread1(o_(5, 0), S, 1)
        D.need('oa1')
        for t in range(4): smf(WA[t], OA+4, o_(t, 1))
        smf(WA[8], OA, o_(8, 0)); smf(WA[8], OA+4, o_(8, 1))
        tail = [(4, 0), (5, 0), (4, 1), (5, 1), (6, 1), (7, 1), (6, 0), (7, 0)]
        early = False
        rd = [(o_(6, 0), RA0, 0), (o_(6, 0), RA0, 1), (o_(7, 0), S, 0), (o_(7, 0), S, 1)]
        def tl(n):
            t_, kk = tail[n]
            smf(WA[t_], OA+4*kk, o_(t_, kk))
            if n < 4: wread1(*rd[(0, 2, 1, 3)[n]])
        k0 = C.WST[w]
        for n in range(k0): tl(n)
        A.nop(max(0, 3 - 2*k0))
        post(0, AK, False)
        for t_ in range(1, 4): post(t_, AK+t_)
        V.op(f"buffer_store_dwordx4 {v(AK,4)}, v{vH1a}, {WS}, s{sH1S} offen")
        tl(k0)
        post(8, 24, False)
        V.op(f"buffer_store_dword v24, v{vH1b}, {WS}, s{sH1S} offen")
        for n in range(k0+1, 8): tl(n)
        if w < 3: D.op(f"ds_read_b128 {v(RA0,4)}, v{vL16} offset:{L_SEL}", 'sel')
        else: A.nop(1)
        post(4, 24, False); post(5, 25)
        A.nop(1)
        post(6, 26); post(7, 27)
        V.op(f"buffer_store_dwordx4 {v(24,4)}, v{vH1a}, {WS}, s{sT} offen")
        ts(12)
        if C.DEV and C.SER and w == 3:
            A(f"""s_memrealtime s[98:99]
            s_lshl_b32 s96, s{sS}, 2
            s_add_u32 s96, s96, s{sH7}
            s_add_u32 s96, s96, s{sH7}
            s_add_u32 s96, s96, {STAMP2+0x4000}
            s_waitcnt lgkmcnt(0)
            v_mov_b32 v{vDM}, s98
            s_mov_b64 exec, 1
            buffer_store_dword v{vDM}, v{vL16}, {WS}, s96 offen
            s_mov_b64 exec, -1""")
        hk1()
        if w < 3:
            if w == 2: A(f"s_cmp_eq_u32 s{sRed}, 0\n s_cbranch_scc1 {L('NORED')}")
            A(f"s_add_u32 s{sT}, s{sM2N}, s{sU7}")
            bits(vPub, [(8, 2, 5), (4, 3, 2)], src=vL16, tmp=vDM)
            if not early:
                A.nop(C.D1[w])
                if C.NP1 > 1:
                    ld1(); delay(C.G1)
            np1 = 2 if (early or C.NP1 > 1) else 1
            A("s_waitcnt lgkmcnt(0)")
            A.label(L('POLL1'))
            ld1()
            A(f"""s_sub_u32 s{sC}, s{sC}, 1
            s_cmp_eq_u32 s{sC}, 0
            s_cbranch_scc1 L_T_TO1""")
            TG = 24
            for q in range(4):
                A(f"s_waitcnt vmcnt({3-q+4*(np1-1)})")
                if np1 > 1:
                    for z in range(2): A(f"v_bitop3_b32 v{TG+2*q+z}, v{PL[q]+2*z}, v{PL[q]+2*z+1}, s{sR8} bitop3:0x7e")
                A(f"v_mfma_f32_16x16x32_bf16 {v(RD,4)}, {v(RA0,4)}, {v(PL[q],4)}, {'0' if q == 0 else v(RD,4)}")
                if np1 == 1:
                    for z in range(2): A(f"v_bitop3_b32 v{TG+2*q+z}, v{PL[q]+2*z}, v{PL[q]+2*z+1}, s{sR8} bitop3:0x7e")
            A(f"""v_or3_b32 v{TG}, v{TG}, v{TG+1}, v{TG+2}
            v_or3_b32 v{TG+3}, v{TG+3}, v{TG+4}, v{TG+5}
            v_or3_b32 v{TG}, v{TG}, v{TG+6}, v{TG+7}
            v_bitop3_b32 v{TG}, v{TG}, v{TG+3}, 1 bitop3:0xa8
            v_cmp_ne_u32 vcc, 0, v{TG}
            v_mov_b32 v{TG+1}, -1
            s_add_u32 s{sT3}, s{sM2R}, s{sU7}
            {'s_nop 0' if C.NOX else 's_cbranch_vccnz ' + L('POLL1')}""")
            A(f"""v_add_f32_dpp v{RD+2}, v{RD}, v{RD} row_ror:8 row_mask:0xf bank_mask:0xf
            v_add_f32_dpp v{RD+3}, v{RD+1}, v{RD+1} row_ror:8 row_mask:0xf bank_mask:0xf
            s_mov_b64 exec, {MSK}
            v_cvt_pk_bf16_f32 v{RD}, v{RD+2}, v{RD+3}
            v_min_u32 v{RD}, -2, v{RD}
            buffer_store_dword v{RD}, v{vPub}, {WS}, s{sT} offen
            buffer_store_dword v{TG+1}, v{vPub}, {WS}, s{sT3} offen
            s_mov_b64 exec, -1""")
            ts(13)
            if w == 2: A.label(L('NORED'))
            if np1 > 1: A("s_waitcnt vmcnt(1)" if w == 2 else "s_waitcnt vmcnt(2)")
        else:
            A(f"""s_add_u32 s{sT2}, s{sS}, 1
            s_min_u32 s{sT2}, s{sT2}, 60
            s_and_b32 s{sT}, s{sT2}, 1
            s_lshr_b32 s{sT2}, s{sT2}, 1
            s_add_u32 s{sT2}, s{sT2}, 2
            s_mov_b64 exec, 15
            s_waitcnt vmcnt({3 if C.NOEX else 4})""")
            wait_flags(sT, sT2, 0x03, True)
            A(f"""s_mov_b64 exec, -1
            s_add_u32 s{sT}, s{sS}, 2
            s_min_u32 s{sT}, s{sT}, 60
            s_and_b32 s{sT}, s{sT}, 1
            s_lshl_b32 s{sT3}, s{sT}, 12
            s_add_u32 s{sT3}, s{sT3}, s{sH7}
            s_add_u32 s{sB[1]}, s{sKV}, {3*32*8192}""")
        if w == 2: A(f"v_mov_b32 v{vFL}, s{sS}")
        if w == 1: A("s_barrier")
        A(f"""s_mov_b32 s{sT}, s{sM2P}
        s_mov_b32 s{sM2P}, s{sM2R}
        s_mov_b32 s{sM2R}, s{sM2N}
        s_mov_b32 s{sM2N}, s{sT}
        s_add_u32 s{sS}, s{sS}, 1
        s_add_u32 s{sKV}, s{sKV}, {32*8192}""")
        if w != 1:
            hk2(); A("s_barrier")
        A.nop(C.DB0[w])
        ts(14)
        tsdump()
        A(f"s_branch {L('LOOP')}")
        A.label(L('DONE'))
        A(f"""buffer_store_dwordx4 {v(MX,4)}, v{vL16}, {WS}, s{sEX} offen offset:{w*1024} sc1
        s_waitcnt vmcnt(0)
        s_barrier""")
        if w == 2:
            A(f"""v_mov_b32 v{vFL}, 64
            s_mov_b64 exec, 1
            buffer_store_dword v{vFL}, v{vL16}, {WS}, s{sFT} offen sc1
            s_mov_b64 exec, -1""")
        stamp(A, 3, 24)
        A("s_endpgm")
    for w in range(4):
        st = len(A.lines)
        gen_loop(w)
        if common.FINE:
            a_, b_, k_ = common.FINE
            seg = A.lines[st:]
            tag = lambda i: f"s_memtime s[{TSP[i]}:{TSP[i]+1}]"
            ia = seg.index(tag(a_)); ib = seg.index(tag(b_))
            body = [x for x in seg[ia+1:ib] if not x.startswith('s_memtime')]
            pre = [x for x in seg[:ia] if not x.startswith('s_memtime s[') or 's[100' in x]
            post = [x for x in seg[ib+1:] if not x.startswith('s_memtime s[') or 's[100' in x]
            out = [tag(1)]; n = 2
            for i, x in enumerate(body):
                out.append(x)
                if (i + 1) % k_ == 0 and n < 14:
                    out.append(tag(n));
                    if w == 0: print('slot', n, 'after', x)
                    n += 1
            out.append(tag(14))
            A.lines[st:] = pre + out + post
    A.label('L_T_TO1'); A(f"s_mov_b32 s{sERR}, 0x04\n s_branch L_ABORT")
    A.label('L_T_TO2'); A(f"s_mov_b32 s{sERR}, 0x05\n s_branch L_ABORT")
```

```python
import sys
from common import *
import common
from role_p import gen_P, arrive_init
from role_pro import gen_mod_ln1

HDR = open('cdna_kernels/%s.s.ref' % KNAME).read().split('; Override launch')[0]

def main(out, roles):
    A = Asm()
    A(f"""s_cmp_ge_u32 s2, 256
    s_cbranch_scc1 L_END
    s_load_dwordx16 s[4:19], s[0:1], 0
    s_load_dwordx16 s[20:35], s[0:1], 64
    s_getreg_b32 s{sXCC}, hwreg(HW_REG_XCC_ID)
    v_lshrrev_b32 v1, 6, v0
    s_and_b32 s{sXCC}, s{sXCC}, 7
    s_lshl_b32 s{sXCC}, s{sXCC}, 2
    s_lshr_b32 s{sXCC}, {sum(x << (4*i) for i, x in enumerate(common.XMAP))}, s{sXCC}
    s_and_b32 s{sXCC}, s{sXCC}, 7
    v_readfirstlane_b32 s{sW}, v1
    v_and_b32 v0, 63, v0
    s_mov_b32 s{sERR}, 0
    s_mov_b32 s{sCU}, 0
    s_waitcnt lgkmcnt(0)""")
    mk_srd(A, SRD_WS, PWS, WS_SIZE); mk_srd(A, SRD_DBG, PDBG, 256)
    A(f"""v_mov_b32 v3, 0
    s_cmp_lg_u32 s{sW}, 0
    s_cbranch_scc1 L_TK
    s_mov_b32 s72, 0x40848000
    s_mov_b32 s73, 0xc8c4c044
    s_lshl_b32 s70, s{sXCC}, 3
    s_lshr_b64 s[72:73], s[72:73], s70
    s_and_b32 s70, s72, 0xff
    v_mov_b32 v1, 1
    v_mov_b32 v2, s70
    s_mov_b64 exec, 1
    buffer_atomic_add v1, v2, {DBG}, 0 offen sc0
    s_waitcnt vmcnt(0)
    ds_write_b32 v3, v1
    s_mov_b64 exec, -1
    s_waitcnt lgkmcnt(0)""")
    A.label('L_TK')
    A(f"""s_barrier
    ds_read_b32 v1, v3
    s_waitcnt lgkmcnt(0)
    v_readfirstlane_b32 s{sCU}, v1
    s_barrier
    s_cmp_ge_u32 s{sCU}, 32
    s_cbranch_scc1 L_END""")
    stamp(A, 0, 1)
    A(f"""s_cmp_eq_u32 s{sXCC}, 0
    s_cbranch_scc1 L_J_T
    s_sub_u32 s{sSUB}, s{sXCC}, 1
    s_cmp_lt_u32 s{sXCC}, 3
    s_cbranch_scc1 L_J_P
    s_sub_u32 s{sSUB}, s{sXCC}, 3
    s_cmp_lt_u32 s{sXCC}, 5
    s_cbranch_scc1 L_J_A
    s_sub_u32 s{sSUB}, s{sXCC}, 5
    s_branch L_ROLE_F""")
    for r in 'TPA':
        A.label(f'L_J_{r}'); A(f"s_branch L_ROLE_{r}")
    A.label('L_ABORT')
    A(f"""s_mov_b64 exec, 1
    v_mov_b32 v1, s{sERR}
    s_lshl_b32 s70, s{sXCC}, 2
    v_mov_b32 v2, s70
    buffer_store_dword v1, v2, {DBG}, 0 offen offset:{D_ERR}
    s_waitcnt vmcnt(0)""")
    A.label('L_END')
    A("s_endpgm")
    def stub(r):
        A.label(f'L_ROLE_{r}')
        A("v_mov_b32 v2, 0")
        arrive_init(A, 1, 2, 3 if r == 'T' else 1)
        A("s_endpgm")
    gens = {}
    gens['P'] = gen_P
    try:
        from role_t import gen_T; gens['T'] = gen_T
    except ImportError: pass
    try:
        from role_a import gen_A; gens['A'] = gen_A
    except ImportError:
        def ga(A):
            A.label('L_ROLE_A'); A("v_mov_b32 v2, 0"); arrive_init(A, 1, 2); gen_mod_ln1(A); A("s_endpgm")
        gens['A'] = ga
    try:
        from role_f import gen_F; gens['F'] = gen_F
    except ImportError: pass
    for r in 'TPAF':
        if r in roles and r in gens: gens[r](A)
        else: stub(r)
    bad = check_hazards(A.lines)
    print('hazards:', bad, 'lines:', len(A.lines), file=sys.stderr)
    txt = HDR + f"""; @launch grid=(256,1,1) block=(256,1,1) lds=163840
.amdgcn_target "amdgcn-amd-amdhsa--gfx950"
.text
.globl {KNAME}_kernel
.p2align 8
.type {KNAME}_kernel,@function
{KNAME}_kernel:
""" + A.text() + f""".section .rodata,"a"
.p2align 6
.amdhsa_kernel {KNAME}_kernel
  .amdhsa_next_free_vgpr 512
  .amdhsa_next_free_sgpr 102
  .amdhsa_accum_offset 256
  .amdhsa_group_segment_fixed_size 0
  .amdhsa_kernarg_size 128
  .amdhsa_user_sgpr_count 2
  .amdhsa_user_sgpr_kernarg_segment_ptr 1
  .amdhsa_system_sgpr_workgroup_id_x 1
  .amdhsa_float_denorm_mode_32 3
.end_amdhsa_kernel
"""
    open(out, 'w').write(txt)
    return bad

if __name__ == '__main__':
    out = sys.argv[1] if len(sys.argv) > 1 else 'k.s'
    roles = sys.argv[2] if len(sys.argv) > 2 else 'TPAF'
    if len(sys.argv) > 3 and sys.argv[3] == 'final': common.DEV = False
    for kv in sys.argv[3:]:
        if '=' in kv:
            k_, v_ = kv.split('='); setattr(common, k_, eval(v_))
    main(out, roles)
```

```python
from asmlib import *
KNAME = 'adaLN_cond__memory_aug_recurrent_mem_tr__swiglu_ffn__prompt'
FLG = 0x0000000
MOD = 0x0010000
M2  = 0x0020000
P1  = 0x1E00000
STAMP = 0x00E0000
H1  = 0x0100000
H2  = 0x0400000
X1  = 0x0700000
PA  = 0x0A00000
PF  = 0x0F00000
KM  = 0x1600000
VM  = 0x1A00000
QB  = 0x2000000
KB  = 0x3000000
VB  = 0x4000000
WS_SIZE = 0x10000000
FP  = FLG + 0x0000
FT  = FLG + 0x2000
FA  = FLG + 0x3000
FH2 = FLG + 0x3200
FF  = FLG + 0x3400
D_INIT = 51*4
D_MOD  = 18*4
D_H1   = 1*4
D_ERR  = 56*4
N_INIT = 224 + 72
PX, PMEM0, PWQ, PWK, PWV, PWO, PSL, PBX, PG, PU, PD, PC, PWM, POUT, PDBG, PWS = [4+2*i for i in range(16)]
SRD_WS = 36; SRD_DBG = 40
SR0, SR1, SR2, SR3, SR4 = 44, 48, 52, 56, 60
sW, sCU, sXCC, sSUB, sERR = 64, 65, 66, 67, 68
WS = s(SRD_WS, 4); DBG = s(SRD_DBG, 4)
SPIN = 1 << 15

def mk_srd(A, dst, ptr, size):
    A(f"""s_mov_b32 s{dst}, s{ptr}
    s_and_b32 s{dst+1}, s{ptr+1}, 0xffff
    s_mov_b32 s{dst+2}, {size}
    s_mov_b32 s{dst+3}, 0x20000""")

def wait_counter(A, off, target, vt, vz, sc, err, srd=DBG, cmp='ge', sleep=2):
    l0 = A.newlab('WC'); l1 = A.newlab('WCD')
    A(f"s_mov_b32 s{sc}, {SPIN}")
    A.label(l0)
    A(f"""buffer_load_dword v{vt}, v{vz}, {srd}, 0 offen offset:{off} sc1
    s_waitcnt vmcnt(0)
    v_cmp_gt_u32 vcc, {target}, v{vt}
    s_cbranch_vccz {l1}
    s_sleep {sleep}
    s_sub_u32 s{sc}, s{sc}, 1
    s_cmp_lg_u32 s{sc}, 0
    s_cbranch_scc1 {l0}
    s_mov_b32 s{sERR}, {err}
    s_branch L_ABORT""")
    A.label(l1)

def rnd2(A, lo, hi, a0, a1, t):
    A(f"""v_cvt_pk_bf16_f32 v{t}, v{a0}, v{a1}
    v_lshlrev_b32 v{lo}, 16, v{t}
    v_and_b32 v{hi}, 0xffff0000, v{t}""")
def rnd1(A, d, a0):
    A(f"""v_cvt_pk_bf16_f32 v{d}, v{a0}, v{a0}
    v_lshlrev_b32 v{d}, 16, v{d}""")

def load_frags(A, jobs, nslots, slot_bytes, sLds, sT, sc='', hooks={}):
    N = len(jobs)
    issued = []
    cnt = [0]
    def issue(i):
        j = jobs[i]
        sl = j.get('slot', i % nslots)
        for (srd, voff, sbase, const, ldsoff) in j['dma']:
            A(f"s_add_u32 m0, s{sLds}, {sl*slot_bytes+ldsoff}")
            A(f"s_add_u32 s{sT}, s{sbase}, {const}")
            A(f"buffer_load_dwordx4 v{voff}, {s(srd,4)}, s{sT} offen {sc} lds")
            cnt[0] += 1
        issued.append(cnt[0])
    for i in range(min(nslots, N)): issue(i)
    for i in range(N):
        j = jobs[i]
        sl = j.get('slot', i % nslots)
        out = cnt[0] - issued[i]
        assert out <= 63
        A(f"s_waitcnt vmcnt({out})")
        if i in hooks: hooks[i]()
        for (dst, vaddr, imm) in j['reads']:
            off = sl*slot_bytes + imm
            assert off < 65536
            A(f"ds_read_b64_tr_b16 {dst}, v{vaddr} offset:{off}")
        if j.get('post'):
            A("s_waitcnt lgkmcnt(0)")
            for ln in j['post']: A(ln(sl*slot_bytes) if callable(ln) else ln)
        if i + nslots < N:
            A("s_waitcnt lgkmcnt(0)")
            issue(i + nslots)
    A("s_waitcnt lgkmcnt(0)")

class WRegs:
    def __init__(self, vbase, abase=0):
        self.vbase = vbase; self.abase = abase
    def __call__(self, i, c):
        na = 256 - self.abase
        if i + c <= na: return a(self.abase + i, c)
        assert i >= na, (i, c)
        r = self.vbase + (i - na)
        assert r + c <= 256, (i, c)
        return v(r, c)

DEV = True
T8LAST = False
PSW = 64
FACK = 0
EARLYF = 60
ALIGN = True
OWNB = 4
ACK = (7,0)
TCH = (2,2)
CWARM = True
SER = False
PSLEEP = 4
XMAP = [0,3,1,5,2,6,4,7]
PST = False
TLOAD = False
FOFF = False
WARM = 0
FDELAY = 1
WST = [0,1,2,2]
FINE = None
NOX = False
DB0 = [0,0,0,0]
NOEX = False
DEX = 0
B1B = 12
AOFF = False
NP2 = 1
G2 = 16
NP1 = 1
G1 = 2
E1 = None
D2R = 0
EXPOS = 'S'
FLPOS = 'S'
RSTPOS = 'S'
TSR = False
P2B = -1
C2B = 8
D1 = [0,0,0]
D2N = 4
XONLY = False
PFSH = 3
H1DELAY = [0,0,0]
B0 = 1
TS = True
STAMP2 = 0x00D0000
def stamp(A, idx, vt=None):
    if not DEV: return
    A(f"""s_memrealtime s[98:99]
    s_memtime s[100:101]
    s_lshl_b32 s96, s{sXCC}, 5
    s_add_u32 s96, s96, s{sCU}
    s_lshl_b32 s96, s96, 2
    s_add_u32 s96, s96, s{sW}
    s_lshl_b32 s96, s96, 7
    s_add_u32 s96, s96, {STAMP + idx*4}
    s_waitcnt lgkmcnt(0)
    v_mov_b32 v{vt}, s98
    v_mov_b32 v{vt+1}, 0
    buffer_store_dword v{vt}, v{vt+1}, {WS}, s96 offen
    s_nop 1
    v_mov_b32 v{vt}, s100
    buffer_store_dword v{vt}, v{vt+1}, {WS}, s96 offen offset:64""")

class Cnt:
    def __init__(self, A, name, mx):
        self.A = A; self.name = name; self.mx = mx
        self.q = []
    def op(self, txt, tag=None):
        self.A(txt); self.q.append(tag)
    def need(self, *tags):
        idx = -1
        for i, t in enumerate(self.q):
            if t in tags: idx = i
        if idx < 0: return
        n = len(self.q) - 1 - idx
        n = min(n, self.mx)
        self.A(f"s_waitcnt {self.name}({n})")
        self.q = self.q[len(self.q) - n:] if n else []
    def drain(self):
        if self.q:
            self.A(f"s_waitcnt {self.name}(0)")
        self.q = []
    def reset(self): self.q = []

def load_coop(A, rounds, nslots, slot_bytes, sLds, sT, hooks={}):
    N = len(rounds); issued = []; cnt = [0]
    def issue(i):
        sl = i % nslots
        for (srd, voff, sbase, const, ldsoff) in rounds[i]['dma']:
            A(f"s_add_u32 m0, s{sLds}, {sl*slot_bytes+ldsoff}")
            A(f"s_add_u32 s{sT}, s{sbase}, {const}")
            A(f"buffer_load_dwordx4 v{voff}, {s(srd,4)}, s{sT} offen lds")
            cnt[0] += 1
        issued.append(cnt[0])
    for i in range(min(nslots, N)): issue(i)
    for i in range(N):
        out = cnt[0] - issued[i]; assert out <= 63
        A(f"s_waitcnt vmcnt({out}) lgkmcnt(0)\n s_barrier")
        if i in hooks: hooks[i]()
        if i >= 1 and i - 1 + nslots < N: issue(i - 1 + nslots)
        if i >= 1 and rounds[i-1].get('post'): rounds[i-1]['post'](((i-1) % nslots)*slot_bytes)
        so = (i % nslots)*slot_bytes
        r = rounds[i]['reads']
        if callable(r): r(so)
        else:
            for (dst, vaddr, imm) in r:
                assert so + imm < 65536
                A(f"ds_read_b64_tr_b16 {dst}, v{vaddr} offset:{so+imm}")
    A("s_waitcnt lgkmcnt(0)\n s_barrier")
    if rounds[N-1].get('post'): rounds[N-1]['post'](((N-1) % nslots)*slot_bytes)

def code_touch(A, l0, l1, vt, vd, nld, srd=SR4, lane=0, stride_waves=True):
    if not CWARM: return
    lp = A.newlab('PC')
    A(f"s_getpc_b64 s[{srd}:{srd+1}]")
    A.label(lp)
    A(f"""s_add_u32 s{srd}, s{srd}, {l0}-{lp}
    s_addc_u32 s{srd+1}, s{srd+1}, 0
    s_and_b32 s{srd+1}, s{srd+1}, 0xffff
    s_mov_b32 s{srd+2}, {l1}-{l0}
    s_mov_b32 s{srd+3}, 0x20000
    v_lshlrev_b32 v{vt}, 7, v{lane}
    s_mul_i32 s97, s{sW}, {8192*nld}""")
    for i in range(nld):
        A(f"buffer_load_dword v{vd}, v{vt}, {s(srd,4)}, s97 offen")
        if i < nld - 1: A("s_add_u32 s97, s97, 8192")
```

```python
from common import *
import common
from role_p import arrive_init
from role_pro import gen_mod_ln1, ln_core

SCALE = 0x3db504f3
LOG2E = 0x3fb8aa3b

def mkbits(A, lane, tmp):
    def bits(dst, spec, acc=False):
        first = not acc
        for (lo, n, sh) in spec:
            A(f"v_bfe_u32 v{tmp}, v{lane}, {lo}, {n}")
            if first: A(f"v_lshlrev_b32 v{dst}, {sh}, v{tmp}"); first = False
            else: A(f"v_lshl_add_u32 v{dst}, v{tmp}, {sh}, v{dst}")
    return bits

def red64(A, x, t):
    for m in ("quad_perm:[1,0,3,2]", "quad_perm:[2,3,0,1]", "row_half_mirror", "row_mirror"):
        A.nop(2)
        A(f"v_add_f32_dpp v{x}, v{x}, v{x} {m} row_mask:0xf bank_mask:0xf")
    for p in ("16", "32"):
        A(f"v_mov_b32 v{t}, v{x}")
        A.nop(2)
        A(f"v_permlane{p}_swap_b32 v{x}, v{t}")
        A(f"v_add_f32 v{x}, v{x}, v{t}")

def poll_words(A, vdst, vaddr, soff, imm, sneed, mask, sC, err, sknown=None, anyof=False):
    l0 = A.newlab('PW'); l1 = A.newlab('PWD')
    if mask == 'lo32': A("s_mov_b32 exec_hi, 0")
    else: A(f"s_mov_b64 exec, {mask}")
    cmpb = f"v_cmp_le_u32 vcc, s{sneed}, v{vdst}\n s_cbranch_vccnz {l1}" if anyof else f"v_cmp_gt_u32 vcc, s{sneed}, v{vdst}\n s_cbranch_vccz {l1}"
    if sknown: A(cmpb)
    A(f"s_mov_b32 s{sC}, {SPIN}")
    A.label(l0)
    A(f"""buffer_load_dword v{vdst}, v{vaddr}, {WS}, s{soff} offen offset:{imm} sc1
    s_waitcnt vmcnt(0)
    {cmpb}
    s_sleep {common.PSLEEP}
    s_sub_u32 s{sC}, s{sC}, 1
    s_cmp_lg_u32 s{sC}, 0
    s_cbranch_scc1 {l0}
    s_mov_b32 s{sERR}, {err}
    s_branch L_ABORT""")
    A.label(l1)
    A("s_mov_b64 exec, -1")

def gemm2_store(A, ACC, vSa, vSb, sbase, sT, TMP):
    for tt in range(2):
        for r in range(4):
            t = TMP + 8*((tt*4 + r) & 1)
            for y in range(4):
                A(f"v_cvt_pk_bf16_f32 v{t+y}, v{ACC[tt][2*y]+r}, v{ACC[tt][2*y+1]+r}")
            A(f"v_cvt_pk_bf16_f32 v{t+4}, v{ACC[tt][8]+r}, v{ACC[tt][8]+r}")
            A(f"s_add_u32 s{sT}, s{sbase}, {(16*tt + r)*36864}")
            A(f"buffer_store_dwordx4 {v(t,4)}, v{vSa}, {WS}, s{sT} offen")
            A(f"buffer_store_short v{t+4}, v{vSb}, {WS}, s{sT} offen")

def reduce_row(A, PL, SEL, RD, vRa, vRb, sbase, sT, vWa, vWb, L_R, L_E, sTagN, sC, err, mid=None):
    l0 = A.newlab('RR'); l1 = A.newlab('RRC'); l2 = A.newlab('RRO')
    def loads():
        for i in range(8):
            A(f"s_add_u32 s{sT}, s{sbase}, {i*4*1152}")
            A(f"buffer_load_dwordx4 {v(PL+4*i,4)}, v{vRa}, {WS}, s{sT} offen sc1")
        A(f"buffer_load_dwordx4 {v(PL+32,4)}, v{vRb}, {WS}, s{sbase} offen sc1")
    loads()
    A(f"s_mov_b32 s{sC}, {SPIN}")
    if mid: mid()
    A(f"s_branch {l1}")
    A.label(l0)
    A(f"""s_sub_u32 s{sC}, s{sC}, 1
    s_cmp_lg_u32 s{sC}, 0
    s_cbranch_scc1 {l2}
    s_mov_b32 s{sERR}, {err}
    s_branch L_ABORT""")
    A.label(l2)
    loads()
    A.label(l1)
    G = RD + 8
    for i in range(8):
        A(f"s_waitcnt vmcnt({8-i})")
        A(f"v_mfma_f32_16x16x32_bf16 {v(RD,4)}, {v(SEL,4)}, {v(PL+4*i,4)}, {'0' if i == 0 else v(RD,4)}")
        if i == 0: A(f"v_xor_b32 v{G}, s{sTagN}, v{PL}")
        else: A(f"v_bitop3_b32 v{G}, v{G}, v{PL+4*i}, s{sTagN} bitop3:0xf6")
    A("s_waitcnt vmcnt(0)")
    A(f"v_mfma_f32_16x16x32_bf16 {v(RD+4,4)}, {v(SEL,4)}, {v(PL+32,4)}, 0")
    A(f"""v_bitop3_b32 v{G}, v{G}, v{PL+32}, s{sTagN} bitop3:0xf6
    v_and_b32 v{G}, 1, v{G}
    v_cmp_ne_u32 vcc, 0, v{G}
    s_cbranch_vccnz {l0}""")
    A.nop(1)
    A(f"ds_write2_b32 v{vWa}, v{RD}, v{RD+1} offset0:0 offset1:16")
    A.nop(2)
    A(f"ds_write_b64 v{vWb}, {v(RD+4,2)}")
    A("s_waitcnt lgkmcnt(0)\n s_barrier")

def init_rows(A, vL16, tmp, sbase, sT):
    for q in range(4): A(f"v_mov_b32 v{tmp+q}, -1")
    A(f"s_mul_i32 s{sT}, s{sW}, 9216\n s_add_u32 s{sT}, s{sT}, s{sbase}")
    for b in range(2):
        for i in range(9):
            A(f"buffer_store_dwordx4 {v(tmp,4)}, v{vL16}, {WS}, s{sT} offen offset:{(i%3)*1024}")
            if i % 3 == 2: A(f"s_add_u32 s{sT}, s{sT}, {3072 if i < 8 else 0x120000 - 6144}")

def st_row(ACC, tt, r, tmp, vSa, vSb, sbase, sT, sTag):
    out = [f"v_cvt_pk_bf16_f32 v{tmp+y}, v{ACC[tt][2*y]+r}, v{ACC[tt][2*y+1]+r}" for y in range(4)]
    out += [f"v_cvt_pk_bf16_f32 v{tmp+4}, v{ACC[tt][8]+r}, v{ACC[tt][8]+r}",
            f"v_and_or_b32 v{tmp}, v{tmp}, -2, s{sTag}",
            f"v_and_or_b32 v{tmp+4}, v{tmp+4}, -2, s{sTag}",
            f"s_add_u32 s{sT}, s{sbase}, {(16*tt + r)*36864}",
            f"buffer_store_dwordx4 {v(tmp,4)}, v{vSa}, {WS}, s{sT} offen",
            f"buffer_store_short v{tmp+4}, v{vSb}, {WS}, s{sT} offen"]
    return out

def ln9(A, Y, T):
    S, Q, M, Cc, U = T, T+1, T+2, T+4, T+6
    A(f"s_nop 0\n v_readfirstlane_b32 s97, v{Y}")
    A.nop(2)
    for i in range(9):
        A(f"v_subrev_f32 v{U}, s97, v{Y+i}")
        if i == 0: A(f"v_mov_b32 v{S}, v{U}\n v_mul_f32 v{Q}, v{U}, v{U}")
        else: A(f"v_add_f32 v{S}, v{S}, v{U}\n v_fmac_f32 v{Q}, v{U}, v{U}")
    A.nop(1)
    for m in ("quad_perm:[1,0,3,2]", "quad_perm:[2,3,0,1]", "row_half_mirror", "row_mirror"):
        A(f"v_add_f32_dpp v{S}, v{S}, v{S} {m} row_mask:0xf bank_mask:0xf")
        A(f"v_add_f32_dpp v{Q}, v{Q}, v{Q} {m} row_mask:0xf bank_mask:0xf")
        A.nop(1)
    for p_ in ("16", "32"):
        A(f"v_mov_b64 {v(U,2)}, {v(S,2)}")
        A.nop(2)
        A(f"v_permlane{p_}_swap_b32 v{S}, v{U}\n v_permlane{p_}_swap_b32 v{Q}, v{U+1}")
        A(f"v_pk_add_f32 {v(S,2)}, {v(S,2)}, {v(U,2)}")
    A(f"""v_mul_f32 v{S}, 0x3ae38e39, v{S}
    v_mul_f32 v{Q}, 0x3ae38e39, v{Q}
    v_fma_f32 v{Q}, -v{S}, v{S}, v{Q}
    v_max_f32 v{Q}, 0, v{Q}
    v_add_f32 v{M}, s97, v{S}""")
    rnd2(A, M, Q, M, Q, U)
    A(f"v_add_f32 v{Q}, 0x3727c5ac, v{Q}")
    rnd1(A, Q, Q)
    A(f"v_sqrt_f32 v{Q}, v{Q}")
    for i in range(0, 8, 2): A(f"v_pk_add_f32 {v(Y+i,2)}, {v(Y+i,2)}, {v(M,2)} op_sel_hi:[1,0] neg_lo:[0,1] neg_hi:[0,1]")
    A(f"v_sub_f32 v{Y+8}, v{Y+8}, v{M}")
    rnd1(A, Q, Q)
    A(f"v_rcp_f32 v{Cc}, v{Q}")
    rnd9(A, Y, U)
    op9(A, 'mul', Y, Cc, bc=True)
    rnd9(A, Y, U)

def op9(A, op, Y, B, bc=False):
    for i in range(0, 8, 2):
        A(f"v_pk_{op}_f32 {v(Y+i,2)}, {v(Y+i,2)}, {v(B if bc else B+i,2)}" + (" op_sel_hi:[1,0]" if bc else ""))
    A(f"v_{op}_f32 v{Y+8}, v{Y+8}, v{B if bc else B+8}")

def reduce_setup(A, bits, lane, t0, t1, SEL, vSa, vSb, vRa, vRb, vWa, vWb, vLa, vLb, vGa, vGb, L_R, L_E, sT):
    A(f"""v_and_b32 v{t0}, 1, v{lane}
    v_lshlrev_b32 v{t0}, 4, v{t0}
    v_mov_b32 v{t1}, 0x3f80
    v_lshlrev_b32 v{t1}, v{t0}, v{t1}
    v_bfe_u32 v{t0}, v{lane}, 2, 2""")
    for q in range(4):
        A(f"""v_cmp_eq_u32 vcc, {q}, v{t0}
        s_nop 1
        v_cndmask_b32 v{SEL+q}, 0, v{t1}, vcc""")
    bits(t1, [(4, 2, 0)])
    A(f"s_mov_b32 s{sT}, {4*36864}\n v_mul_lo_u32 v{vSa}, s{sT}, v{t1}\n v_mov_b32 v{vSb}, v{vSa}")
    bits(vSa, [(0, 4, 4)], acc=True); bits(vSb, [(0, 4, 1)], acc=True)
    A(f"""s_lshl_b32 s{sT}, s{sW}, 8
    v_add_u32 v{vSa}, s{sT}, v{vSa}
    s_lshl_b32 s{sT}, s{sW}, 5
    s_add_u32 s{sT}, s{sT}, 1024
    v_add_u32 v{vSb}, s{sT}, v{vSb}""")
    bits(t1, [(4, 2, 0)])
    A(f"v_mul_u32_u24 v{vRa}, 1152, v{t1}")
    bits(vRa, [(0, 4, 4)], acc=True)
    A(f"s_lshl_b32 s{sT}, s{sW}, 8\n v_add_u32 v{vRa}, s{sT}, v{vRa}")
    bits(t1, [(3, 3, 0)])
    A(f"v_mul_u32_u24 v{vRb}, 1152, v{t1}")
    bits(vRb, [(0, 3, 4)], acc=True)
    A(f"s_mul_i32 s{sT}, s{sW}, {8*1152}\n s_add_u32 s{sT}, s{sT}, 1024\n v_add_u32 v{vRb}, s{sT}, v{vRb}")
    bits(vWa, [(4, 2, 9), (0, 4, 2)])
    A(f"s_lshl_b32 s{sT}, s{sW}, 7\n s_add_u32 s{sT}, s{sT}, {L_R}\n v_add_u32 v{vWa}, s{sT}, v{vWa}")
    bits(vWb, [(3, 1, 8), (0, 3, 5), (4, 2, 3)])
    A(f"s_lshl_b32 s{sT}, s{sW}, 9\n s_add_u32 s{sT}, s{sT}, {L_E}\n v_add_u32 v{vWb}, s{sT}, v{vWb}")
    A(f"v_lshlrev_b32 v{vLa}, 5, v{lane}\n v_lshlrev_b32 v{vLb}, 2, v{lane}")
    A(f"v_lshlrev_b32 v{vGa}, 4, v{lane}\n v_lshlrev_b32 v{vGb}, 1, v{lane}\n v_add_u32 v{vGb}, 1024, v{vGb}")

def load9(A, dst, tmp, vGa, vGb, srd, soff, imm, sc='sc1'):
    A(f"buffer_load_dwordx4 {v(tmp,4)}, v{vGa}, {srd}, {soff} offen offset:{imm} {sc}")
    A(f"buffer_load_ushort v{tmp+4}, v{vGb}, {srd}, {soff} offen offset:{imm} {sc}")
def unpack9(A, dst, tmp):
    for d in range(4):
        A(f"v_lshlrev_b32 v{dst+2*d}, 16, v{tmp+d}\n v_and_b32 v{dst+2*d+1}, 0xffff0000, v{tmp+d}")
    A(f"v_lshlrev_b32 v{dst+8}, 16, v{tmp+4}")
def rnd9(A, r, t):
    for d in range(4): rnd2(A, r+2*d, r+2*d+1, r+2*d, r+2*d+1, t)
    rnd1(A, r+8, r+8)
def store9(A, r, tmp, vGa, vGb, srd, soff, sc='sc1'):
    for d in range(4): A(f"v_cvt_pk_bf16_f32 v{tmp+d}, v{r+2*d}, v{r+2*d+1}")
    A(f"v_cvt_pk_bf16_f32 v{tmp+4}, v{r+8}, v{r+8}")
    A(f"buffer_store_dwordx4 {v(tmp,4)}, v{vGa}, {srd}, {soff} offen {sc}")
    A(f"buffer_store_short v{tmp+4}, v{vGb}, {srd}, {soff} offen {sc}")
def read_sums(A, Y, E, vLa, vLb, L_R, L_E):
    A(f"ds_read_b128 {v(Y,4)}, v{vLa} offset:{L_R}\n ds_read_b128 {v(Y+4,4)}, v{vLa} offset:{L_R+16}")
    for i in range(8): A(f"ds_read_b32 v{E+i}, v{vLb} offset:{L_E+256*i}")
    A("s_waitcnt lgkmcnt(0)")
    for st in (4, 2):
        for i in range(st): A(f"v_add_f32 v{E+i}, v{E+i}, v{E+i+st}")
    A(f"v_add_f32 v{Y+8}, v{E}, v{E+1}")

def gen_A(A):
    A.label('L_ROLE_A')
    def ta(i):
        if common.DEV and common.TS:
            l = A.newlab('TA')
            A(f"s_cmp_lg_u32 s{sN}, 20\n s_cbranch_scc1 {l}")
            stamp(A, 4+i, 254)
            A.label(l)
    sT, sC, sN, sLds, sWo, sQKV, sEX, sFP, sFTo, sPA, sPR, sFA, sFH, sRow, sNeed, sT2 = range(74, 90)
    lane, t0, t1, vZ = 0, 1, 2, 3
    A(f"""v_mov_b32 v{vZ}, 0
    s_lshl_b32 s{sT}, s{sSUB}, 7
    s_lshl_b32 s{sT2}, s{sCU}, 2
    s_add_u32 s{sFA}, s{sT}, {FA}
    s_add_u32 s{sT}, s{sT}, s{sT2}
    s_add_u32 s{sFH}, s{sT}, {FH2}
    s_add_u32 s{sT}, s{sT}, {FA}
    buffer_store_dword v{vZ}, v{vZ}, {WS}, s{sT} offen
    buffer_store_dword v{vZ}, v{vZ}, {WS}, s{sFH} offen sc1""")
    A(f"""s_mul_i32 s{sT}, s{sSUB}, 0x240000
    s_mul_i32 s{sPR}, s{sCU}, 36864
    s_add_u32 s{sPR}, s{sPR}, s{sT}
    s_add_u32 s{sPR}, s{sPR}, {PA}""")
    gen_mod_ln1(A)
    A(f"v_lshlrev_b32 v4, 4, v0")
    init_rows(A, 4, 8, sPR, sT)
    A("s_waitcnt vmcnt(0)\n s_barrier")
    A(f"v_mov_b32 v{vZ}, 0")
    arrive_init(A, t0, vZ)
    stamp(A, 1, 2)
    if common.AOFF: A("s_endpgm")
    A("s_barrier")
    bits = mkbits(A, lane, t0)
    mk_srd(A, SR3, PWO, 4096*1152)
    vDm, vD8, vTr, vL16, vFP, vFT, vFA, vL4, vKW, vVW, vVR, vKR, vOW, vOR = range(4, 18)
    vSa, vSb, vRa, vRb, vWa, vWb, vLa, vLb, vGa, vGb = range(18, 28)
    SEL = 28; GA = 32; CB = 42; SBv = 52
    vTok = 61
    QF = 64; KF = 96; VF = 128; SX = 136; SMm = 152; OO = 168; KMF = 184; TM = 216
    L_KM = 0; L_VM = 2048; L_OO = 4096; L_R = 12288; L_E = 14336; L_ST = 16384; L_RDY = 0xF000
    A(f"v_mov_b32 v{vZ}, 0")
    bits(t1, [(4, 2, 0)])
    A(f"v_mul_u32_u24 v{vDm}, 1152, v{t1}")
    bits(vDm, [(0, 4, 4)], acc=True)
    A(f"""s_lshl_b32 s{sLds}, s{sW}, 13
    s_mul_i32 s{sWo}, s{sCU}, {128*1152}
    s_mul_i32 s{sT}, s{sW}, {32*1152}
    s_add_u32 s{sWo}, s{sWo}, s{sT}""")
    bits(vTr, [(5, 1, 12), (4, 1, 10), (2, 2, 8), (0, 2, 3)])
    A(f"s_lshl_b32 s{sT}, s{sW}, 5\n v_add_u32 v{vD8}, s{sT}, v{vTr}\n v_add_u32 v{vTr}, s{sT}, v{vD8}")
    WF = lambda t, kk: (t*4 + kk)*4
    rounds = []
    for y in range(5):
        def rd(so, y=y):
            A(f"v_add_u32 v{t1}, {so}, v{vTr if y < 4 else vD8}")
            for kk in range(4):
                for u in range(2 if y < 4 else 1):
                    for yy in range(2): A(f"ds_read_b64_tr_b16 {a(WF(2*y+u, kk) + 2*yy, 2)}, v{t1} offset:{kk*8192 + yy*2048 + u*32}")
                A("s_waitcnt lgkmcnt(8)")
        rounds.append(dict(dma=[(SR3, vDm, sWo, 4*q*1152 + y*256, q*1024) for q in range(8)], reads=rd))
    load_coop(A, rounds, 5, 32768, sLds, sT)
    reduce_setup(A, bits, lane, t0, t1, SEL, vSa, vSb, vRa, vRb, vWa, vWb, vLa, vLb, vGa, vGb, L_R, L_E, sT)
    A(f"s_mov_b32 s{sT}, {MOD+2*1152}")
    load9(A, GA, TM, vGa, vGb, WS, f"s{sT}", 0); load9(A, SBv, TM+8, vGa, vGb, WS, f"s{sT}", 1152); load9(A, CB, TM+16, vGa, vGb, WS, f"s{sT}", 2304)
    A("s_waitcnt vmcnt(0)")
    unpack9(A, GA, TM); unpack9(A, SBv, TM+8); unpack9(A, CB, TM+16)
    for i in range(9): A(f"v_add_f32 v{CB+i}, 1.0, v{CB+i}")
    rnd9(A, CB, TM)
    A(f"""v_lshlrev_b32 v{vL16}, 4, v{lane}
    v_lshlrev_b32 v{vL4}, 2, v{lane}
    v_mov_b32 v{vFP}, 0
    v_mov_b32 v{vFT}, 0""")
    bits(vKW, [(3, 1, 8), (1, 1, 7), (4, 2, 5), (0, 1, 3), (2, 1, 2)])
    A(f"s_lshl_b32 s{sT}, s{sW}, 9\n v_add_u32 v{vKW}, s{sT}, v{vKW}")
    bits(vVW, [(0, 4, 4), (4, 2, 2)])
    A(f"s_add_u32 s{sT}, s{sT}, {L_VM}\n v_add_u32 v{vVW}, s{sT}, v{vVW}")
    bits(vVR, [(0, 5, 4), (5, 1, 3)])
    A(f"v_add_u32 v{vVR}, s{sT}, v{vVR}")
    bits(vKR, [(5, 1, 7), (0, 3, 4)])
    A(f"s_lshl_b32 s{sT}, s{sW}, 11\n s_add_u32 s{sT}, s{sT}, {L_OO}\n v_add_u32 v{vOW}, s{sT}, v{vL16}")
    bits(vOR, [(4, 2, 9), (0, 4, 4)])
    A(f"""v_and_b32 v{vTok}, 31, v{lane}
    v_bfe_u32 v{t0}, v{lane}, 5, 1
    v_lshlrev_b32 v{t0}, 2, v{t0}
    v_sub_u32 v{vTok}, v{vTok}, v{t0}
    s_lshl_b32 s{sQKV}, s{sSUB}, 5
    s_add_u32 s{sQKV}, s{sQKV}, s{sCU}
    s_lshl_b32 s{sFP}, s{sQKV}, 7
    s_lshl_b32 s{sEX}, s{sQKV}, 12
    s_mul_i32 s{sRow}, s{sQKV}, 1152
    s_lshl_b32 s{sQKV}, s{sQKV}, 13
    s_lshl_b32 s{sT}, s{sW}, 10
    s_add_u32 s{sEX}, s{sEX}, s{sT}
    s_add_u32 s{sEX}, s{sEX}, {KM}
    s_lshl_b32 s{sFTo}, s{sCU}, 7
    s_add_u32 s{sFTo}, s{sFTo}, {FT}
    s_mul_i32 s{sT}, s{sSUB}, 0x240000
    s_add_u32 s{sT}, s{sT}, {PA}
    s_mul_i32 s{sPA}, s{sCU}, 1152
    s_add_u32 s{sPA}, s{sPA}, s{sT}
    s_mul_i32 s{sPR}, s{sCU}, 36864
    s_add_u32 s{sPR}, s{sPR}, s{sT}
    s_mov_b32 s{sN}, 0""")
    wait_counter(A, D_INIT, N_INIT, t0, vZ, sC, 0x31)
    A("s_barrier")
    stamp(A, 2, TM)
    MK = lambda r: s(4 + 2*r, 2)
    for r in range(16):
        A(f"v_cmp_le_i32 {MK(r)}, {(r & 3) + 8*(r >> 2)}, v{vTok}")
    vQR = vTok
    sBuf = 90
    def dma_qkv():
        A(f"s_lshl_b32 s{sT2}, s{sW}, 11\n s_add_u32 s{sC}, s{sBuf}, s{sT2}\n s_add_u32 s{sT2}, s{sT2}, s{sQKV}")
        for m, base in enumerate((KB, QB, VB)):
            A(f"s_add_u32 m0, s{sC}, {m*8192}\n s_add_u32 s{sT}, s{sT2}, {base}")
            for j in range(2): A(f"buffer_load_dwordx4 v{vL16}, {WS}, s{sT} offen offset:{j*1024} sc1 lds")
        A(f"s_add_u32 s{sQKV}, s{sQKV}, {64*8192}\n s_xor_b32 s{sBuf}, s{sBuf}, 0x8000")
    A(f"s_mov_b32 s{sBuf}, 0x10000\n v_add_u32 v{vQR}, 0x10000, v{vL16}\n s_mov_b32 s{sNeed}, 1")
    poll_words(A, vFP, vL16, sFP, FP, sNeed, "15", sC, 0x32, True)
    dma_qkv()
    A("s_waitcnt vmcnt(0)\n s_barrier")
    MXv = TM+4; XR = TM+8
    def rscale(r, n):
        for i in range(0, n, 2):
            rnd2(A, r+i, r+i+1, r+i, r+i+1, TM)
            A(f"v_mul_f32 v{r+i}, s{sT}, v{r+i}\n v_mul_f32 v{r+i+1}, s{sT}, v{r+i+1}")
            rnd2(A, r+i, r+i+1, r+i, r+i+1, TM)
    def prework():
        for ks in range(8):
            A(f"ds_read_b128 {v(KF+4*ks,4)}, v{vQR} offset:{ks*1024}")
            A(f"ds_read_b128 {v(QF+4*ks,4)}, v{vQR} offset:{8192+ks*1024}")
            if ks >= 6:
                A(f"s_waitcnt lgkmcnt(12)")
                A(f"v_mfma_f32_32x32x16_bf16 {v(SX,16)}, {v(KF+4*(ks-6),4)}, {v(QF+4*(ks-6),4)}, {'0' if ks == 6 else v(SX,16)}")
        A(f"s_lshl_b32 s{sT}, s{sW}, 11\n v_add_u32 v{t0}, s{sT}, v{vQR}")
        for j in range(2): A(f"ds_read_b128 {v(VF+4*j,4)}, v{t0} offset:{16384+j*1024}")
        for ks in range(2, 8):
            A(f"s_waitcnt lgkmcnt({14-2*(ks-1)})")
            A(f"v_mfma_f32_32x32x16_bf16 {v(SX,16)}, {v(KF+4*ks,4)}, {v(QF+4*ks,4)}, {v(SX,16)}")
        A(f"v_xor_b32 v{vQR}, 0x8000, v{vQR}")
    def prework2():
        A(f"s_mov_b32 s{sT}, {SCALE}")
        rscale(SX, 16)
    def prework3():
        A(f"v_mov_b32 v{TM+2}, 0xce6e6b28")
        for r in range(16): A(f"v_cndmask_b32 v{SX+r}, v{TM+2}, v{SX+r}, {MK(r)}")
        A(f"v_max3_f32 v{MXv}, v{SX}, v{SX+1}, v{SX+2}")
        for r in range(3, 15, 2): A(f"v_max3_f32 v{MXv}, v{MXv}, v{SX+r}, v{SX+r+1}")
        A(f"v_max_f32 v{MXv}, v{MXv}, v{SX+15}")
    sPend = 91
    def flush_fh2(cnt=0):
        l = A.newlab('FH')
        A(f"""s_cmp_eq_u32 s{sPend}, 0
        s_cbranch_scc1 {l}
        s_waitcnt vmcnt({cnt})
        v_mov_b32 v{t0}, s{sPend}
        s_mov_b64 exec, 1
        buffer_store_dword v{t0}, v{vZ}, {WS}, s{sFH} offen sc1
        s_mov_b64 exec, -1
        s_mov_b32 s{sPend}, 0""")
        A.label(l)
    A(f"s_mov_b32 s{sPend}, 0\n ds_write_b32 v{vZ}, v{vZ} offset:{L_RDY}")
    def exfetch(delta):
        A(f"""s_mov_b64 exec, 3
        buffer_load_dword v{vFT}, v{vL4}, {WS}, s{sFTo} offen sc1
        s_mov_b64 exec, -1
        s_add_u32 s{sT2}, s{sEX}, {delta}
        buffer_load_dwordx4 {v(TM+20,4)}, v{vL16}, {WS}, s{sT2} offen sc1""")
    prework(); A.nop(10); prework2(); prework3()
    A.label('L_A_LOOP')
    ta(0)
    A(f"s_lshl_b32 s{sNeed}, s{sN}, 1\n s_add_u32 s{sNeed}, s{sNeed}, s{sSUB}\n s_add_u32 s{sNeed}, s{sNeed}, 1")
    A(f"""s_mov_b32 s{sC}, {SPIN}
    s_waitcnt vmcnt(4)
    s_cmp_lg_u32 s{sPend}, 0
    s_cbranch_scc1 L_A_EXC""")
    A.label('L_A_EXP')
    A("s_waitcnt vmcnt(0)")
    A.label('L_A_EXC')
    A(f"""s_mov_b64 exec, 3
    v_cmp_le_u32 vcc, s{sNeed}, v{vFT}
    s_mov_b64 exec, -1
    s_cbranch_vccnz L_A_EXOK""")
    flush_fh2()
    A(f"s_sleep {common.PSLEEP}")
    exfetch(0)
    A(f"""s_sub_u32 s{sC}, s{sC}, 1
    s_cmp_lg_u32 s{sC}, 0
    s_cbranch_scc1 L_A_EXP
    s_mov_b32 s{sERR}, 0x33
    s_branch L_ABORT""")
    A.label('L_A_EXOK')
    ta(1)
    A(f"""ds_write2_b32 v{vKW}, v{TM+20}, v{TM+21} offset0:0 offset1:4
    ds_write2_b32 v{vVW}, v{TM+22}, v{TM+23} offset0:0 offset1:64""")
    A("s_waitcnt lgkmcnt(0)\n s_barrier")
    ta(2)
    for ks in range(8): A(f"ds_read_b128 {v(KMF+4*ks,4)}, v{vKR} offset:{L_KM+ks*256}")
    VMf = TM+16
    A(f"ds_read_b64 {v(VMf,2)}, v{vVR}")
    for ks in range(8):
        A(f"s_waitcnt lgkmcnt({8-ks})")
        A(f"v_mfma_f32_32x32x16_bf16 {v(SMm,16)}, {v(KMF+4*ks,4)}, {v(QF+4*ks,4)}, {'0' if ks == 0 else v(SMm,16)}")
    A(f"s_cmp_eq_u32 s{sN}, 31\n s_cbranch_scc1 L_A_NODMA\n s_add_u32 s{sNeed}, s{sN}, 2")
    poll_words(A, vFP, vL16, sFP, FP, sNeed, "15", sC, 0x32, True)
    dma_qkv()
    A.label('L_A_NODMA')
    load9(A, XR, XR, vGa, vGb, s(SR0,4), f"s{sRow}", 0, sc='')
    A(f"s_mov_b32 s{sT}, {SCALE}")
    A.nop(7)
    rscale(SMm, 4)
    A(f"""v_max3_f32 v{MXv}, v{MXv}, v{SMm}, v{SMm+1}
    v_max3_f32 v{MXv}, v{MXv}, v{SMm+2}, v{SMm+3}
    v_mov_b32 v{MXv+1}, v{MXv}
    s_mov_b32 s{sT}, {LOG2E}
    s_nop 0
    v_permlane32_swap_b32 v{MXv}, v{MXv+1}
    v_max_f32 v{MXv}, v{MXv}, v{MXv+1}
    v_mul_f32 v{MXv}, s{sT}, v{MXv}""")
    vals = [SX+i for i in range(16)] + [SMm+i for i in range(4)]
    for r in vals: A(f"v_fma_f32 v{r}, v{r}, s{sT}, -v{MXv}")
    for r in vals: A(f"v_exp_f32 v{r}, v{r}")
    PP = KMF
    for i in range(10): A(f"v_cvt_pk_bf16_f32 v{PP+i}, v{vals[2*i]}, v{vals[2*i+1]}")
    A("s_waitcnt lgkmcnt(0)")
    Zr = TM+6
    A(f"v_add_f32 v{Zr}, v{vals[0]}, v{vals[1]}")
    A(f"v_mfma_f32_32x32x16_bf16 {v(OO,16)}, {v(VF,4)}, {v(PP,4)}, 0")
    for r in vals[2:4]: A(f"v_add_f32 v{Zr}, v{Zr}, v{r}")
    A(f"v_mfma_f32_32x32x16_bf16 {v(OO,16)}, {v(VF+4,4)}, {v(PP+4,4)}, {v(OO,16)}")
    for r in vals[4:14]: A(f"v_add_f32 v{Zr}, v{Zr}, v{r}")
    A(f"v_mfma_f32_32x32x8_bf16 {v(OO,16)}, {v(VMf,2)}, {v(PP+8,2)}, {v(OO,16)}")
    for r in vals[14:]: A(f"v_add_f32 v{Zr}, v{Zr}, v{r}")
    A(f"""v_mov_b32 v{Zr+1}, v{Zr}
    s_nop 1
    v_permlane32_swap_b32 v{Zr}, v{Zr+1}
    v_add_f32 v{Zr}, v{Zr}, v{Zr+1}
    v_rcp_f32 v{Zr}, v{Zr}
    s_nop 0""")
    for r in range(0, 16, 2): A(f"v_pk_mul_f32 {v(OO+r,2)}, {v(OO+r,2)}, {v(Zr,2)} op_sel_hi:[1,0]")
    for i in range(8): A(f"v_cvt_pk_bf16_f32 v{SX+i}, v{OO+2*i}, v{OO+2*i+1}")
    A(f"""ds_write_b128 v{vOW}, {v(SX,4)}
    ds_write_b128 v{vOW}, {v(SX+4,4)} offset:1024""")
    flush_fh2(2)
    A("s_waitcnt lgkmcnt(0)\n s_barrier")
    ta(3)
    OF = KMF
    for tt in range(2):
        for kk in range(4): A(f"ds_read_b128 {v(OF+(tt*4+kk)*4,4)}, v{vOR} offset:{L_OO+kk*2048+tt*256}")
    ACC = [[QF + (tt*9 + t)*4 for t in range(9)] for tt in range(2)]
    sTag = sFA
    A(f"s_bfe_u32 s{sTag}, s{sN}, 0x10001")
    strow = lambda tt, r: st_row(ACC, tt, r, SX + 8*(r & 1), vSa, vSb, sPA, sT, sTag)
    sidel = []
    for tt in range(2):
        n = 0
        for kk in range(4):
            A(f"s_waitcnt lgkmcnt({7-(tt*4+kk)})")
            for t in range(9):
                d = v(ACC[tt][t], 4)
                A(f"v_mfma_f32_16x16x32_bf16 {d}, {v(OF+(tt*4+kk)*4,4)}, {a(WF(t,kk),4)}, {'0' if kk == 0 else d}")
                n += 1
                if tt == 1 and n > 3 and sidel:
                    A(sidel.pop(0))
                    if sidel and n % 3 == 0: A(sidel.pop(0))
        if tt == 0: sidel = sum([strow(0, r) for r in range(4)], [])
    assert not sidel
    ta(4)
    A.nop(4)
    for r in range(4):
        for x in strow(1, r): A(x)
    ta(5)
    A("s_waitcnt vmcnt(16)")
    flush_fh2(16)
    A(f"s_cmp_eq_u32 s{sN}, 31\n s_cbranch_scc1 L_A_NOPRE\n s_barrier")
    prework(); A.nop(10); prework2()
    A.label('L_A_NOPRE')
    ta(6); ta(7)
    A(f"s_add_u32 s{sNeed}, s{sN}, 1")
    reduce_row(A, OO, SEL, SMm, vRa, vRb, sPR, sT, vWa, vWb, L_R, L_E, sTag, sC, 0x34, mid=prework3)
    exfetch(64*4096)
    ta(8)
    A(f"""s_and_b32 s{sT}, s{sN}, 3
    s_cmp_lg_u32 s{sT}, s{sW}
    s_cbranch_scc1 L_A_NOLN""")
    Y = KMF; E_ = SMm; X9 = OO; TL = KMF+12
    unpack9(A, X9, XR)
    read_sums(A, Y, E_, vLa, vLb, L_R, L_E)
    flush_fh2()
    rnd9(A, Y, TL)
    op9(A, 'mul', Y, GA)
    rnd9(A, Y, TL)
    op9(A, 'add', Y, X9)
    A(f"s_add_u32 s{sT}, s{sRow}, {X1}")
    store9(A, Y, TM+24, vGa, vGb, WS, f"s{sT}")
    unpack9(A, Y, TM+24)
    ln9(A, Y, TL)
    op9(A, 'mul', Y, CB)
    rnd9(A, Y, TL)
    op9(A, 'add', Y, SBv)
    A(f"s_add_u32 s{sT}, s{sRow}, {H2}")
    store9(A, Y, TM+32, vGa, vGb, WS, f"s{sT}")
    A(f"s_mov_b32 s{sPend}, s{sNeed}")
    A.label('L_A_NOLN')
    ta(9)
    A(f"""s_bitcmp1_b32 s{sN}, 0
    s_mov_b32 s{sT}, 0x120000
    s_cselect_b32 s{sT}, {(-0x120000) & 0xffffffff}, s{sT}
    s_add_u32 s{sPA}, s{sPA}, s{sT}
    s_add_u32 s{sPR}, s{sPR}, s{sT}
    s_add_u32 s{sEX}, s{sEX}, {64*4096}
    s_add_u32 s{sRow}, s{sRow}, {64*1152}
    s_add_u32 s{sN}, s{sN}, 1
    s_cmp_lt_u32 s{sN}, 32
    s_cbranch_scc1 L_A_LOOP""")
    flush_fh2()
    stamp(A, 3, TM)
    A("s_endpgm")
```

```python
from common import *
import common
from role_p import arrive_init
from role_a import *

def gen_F(A):
    A.label('L_ROLE_F')
    def ta(i):
        if common.DEV and common.TS:
            l = A.newlab('TA')
            A(f"s_cmp_lg_u32 s{sN}, 12\n s_cbranch_scc1 {l}")
            stamp(A, 4+i, 132)
            A.label(l)
    sT, sC, sS, sLds, sGU, sWd, sMx, sPF, sPR, sFF, sRow, sNeed, sT2, sN, sH = range(70, 85)
    lane, t0, t1, vZ = 0, 1, 2, 3
    W = WRegs(134)
    L_H = 0; L_ACT = 36864; L_A16 = L_ACT + 8192; L_R = L_ACT; L_E = L_ACT + 2048; L_WD = 46080; L_MIX = 119808
    mk_srd(A, SR0, PG, 576*9216); mk_srd(A, SR1, PU, 576*9216); mk_srd(A, SR2, PD, 4608*1152); mk_srd(A, SR3, POUT, 2048*1152)
    A(f"""v_mov_b32 v{vZ}, 0
    v_lshlrev_b32 v4, 4, v0
    s_mul_i32 s{sT}, s{sSUB}, 0x240000
    s_mul_i32 s{sPR}, s{sCU}, 36864
    s_add_u32 s{sPR}, s{sPR}, s{sT}
    s_add_u32 s{sPR}, s{sPR}, {PF}""")
    if common.WARM:
        A(f"""s_lshl_b32 s{sT2}, s{sSUB}, 5
        s_add_u32 s{sT2}, s{sT2}, s{sCU}
        s_lshl_b32 s{sT2}, s{sT2}, 2
        s_add_u32 s{sT2}, s{sT2}, s{sW}""")
        for ptr, size in ((PWK, 4718592), (PWQ, 4718592), (PWV, 4718592), (PWO, 4718592), (PG, 5308416), (PU, 5308416), (PD, 5308416))[:common.WARM]:
            mk_srd(A, SR4, ptr, size)
            per = size // 384
            A(f"s_mul_i32 s{sT}, s{sT2}, {per}")
            for i in range((per + 1023)//1024):
                A(f"buffer_load_dwordx4 {v(16+4*(i%8),4)}, v4, {s(SR4,4)}, s{sT} offen offset:{(i%4)*1024}")
                if i % 4 == 3: A(f"s_add_u32 s{sT}, s{sT}, 4096")
            A("s_waitcnt vmcnt(40)")
    if common.FOFF == 1: A("s_endpgm")
    init_rows(A, 4, 8, sPR, sT)
    if common.FDELAY == 1: wait_counter(A, D_MOD, 54, t0, vZ, sC, 0x42, sleep=16)
    if common.FDELAY == 2: wait_counter(A, D_H1, 64, t0, vZ, sC, 0x42, sleep=16)
    A("s_waitcnt vmcnt(0)\n s_barrier")
    arrive_init(A, t0, vZ)
    bits = mkbits(A, lane, t0)
    vL16, vL4, vFH, vFF, vWL, vMR, vAW0, vAW1, vA16W, vOR, vA16R = range(4, 15)
    vB = [15, 16, 17, 18]
    vSa, vSb, vRa, vRb, vWa, vWb, vLa, vLb, vGa, vGb = range(19, 29)
    vDH = 29
    GB = 38
    XR = 47
    XR = 48
    SEL = 56
    WK2 = 60
    WK = 60
    vDg, vDd, vD8, vDx, vTg, vTd, vT16, vTm, vMW = range(30, 39)
    bits(t1, [(2, 4, 0)])
    A(f"v_mul_u32_u24 v{vDg}, 9216, v{t1}\n v_mul_u32_u24 v{vDd}, 1152, v{t1}\n v_mov_b32 v{vD8}, v{vDd}")
    bits(vDg, [(0, 2, 4)], acc=True); bits(vDd, [(0, 2, 4)], acc=True); bits(vD8, [(0, 1, 4)], acc=True)
    A(f"""v_bfe_u32 v{t0}, v{lane}, 1, 1
    v_mul_u32_u24 v{t0}, {32*1152}, v{t0}
    v_add_u32 v{vD8}, v{vD8}, v{t0}""")
    bits(t1, [(1, 5, 0)])
    A(f"v_mul_u32_u24 v{vDx}, 9216, v{t1}")
    bits(vDx, [(0, 1, 4)], acc=True)
    A(f"""s_mul_i32 s{sGU}, s{sCU}, 288
    s_mul_i32 s{sT}, s{sW}, {32*9216}
    s_add_u32 s{sMx}, s{sGU}, s{sT}
    s_add_u32 s{sMx}, s{sMx}, 256
    s_lshl_b32 s{sT}, s{sW}, 6
    s_add_u32 s{sGU}, s{sGU}, s{sT}
    s_mul_i32 s{sWd}, s{sCU}, {144*1152}
    s_mul_i32 s{sT}, s{sW}, 288
    s_add_u32 s{sWd}, s{sWd}, s{sT}
    s_lshl_b32 s{sLds}, s{sW}, 11
    s_add_u32 s{sLds}, s{sLds}, {L_MIX}
    v_lshlrev_b32 v{vL16}, 4, v{lane}
    v_lshlrev_b32 v{vL4}, 2, v{lane}
    v_add_u32 v{vMW}, s{sLds}, v{vL16}""")
    bits(vTm, [(0, 1, 10), (4, 2, 8), (2, 2, 5), (1, 1, 3)])
    A(f"v_add_u32 v{vTm}, s{sLds}, v{vTm}")
    jobs = []
    for i in range(5):
        post = [(lambda sb, q=q: f"ds_write_b128 v{vMW}, {v(WK+4*q,4)} offset:{sb+q*1024}") for q in range(2)] + ["s_waitcnt lgkmcnt(0)"]
        jobs.append(dict(dma=[(SR0, vDx, sMx, i*128*9216, 0), (SR1, vDx, sMx, i*128*9216, 1024)],
                         reads=[(v(WK+4*mt+2*yy, 2), vTm, yy*128 + mt*16) for mt in range(2) for yy in range(2)], post=post))
    load_frags(A, jobs, 5, 8192, sLds, sT)
    A(f"""s_mul_i32 s{sT}, s{sW}, 18432
    s_add_u32 s{sT}, s{sT}, {L_WD}
    v_add_u32 v{vWL}, s{sT}, v{vL16}
    s_lshl_b32 s{sLds}, s{sW}, 12
    s_mul_i32 s{sGU}, s{sCU}, 288
    s_mul_i32 s{sT}, s{sW}, {16*9216}
    s_add_u32 s{sGU}, s{sGU}, s{sT}
    s_mul_i32 s{sWd}, s{sCU}, {144*1152}
    s_lshl_b32 s{sMx}, s{sW}, 8
    s_add_u32 s{sMx}, s{sMx}, s{sWd}
    s_mul_i32 s{sT}, s{sW}, {16*1152}
    s_add_u32 s{sWd}, s{sWd}, s{sT}""")
    bits(t1, [(4, 2, 0)])
    A(f"v_mul_u32_u24 v{vDg}, 9216, v{t1}\n v_mul_u32_u24 v{vDd}, 1152, v{t1}")
    bits(vDg, [(0, 4, 4)], acc=True); bits(vDd, [(0, 4, 4)], acc=True)
    bits(vTg, [(4, 2, 11), (2, 2, 8), (0, 2, 3)])
    bits(vTd, [(4, 2, 10), (2, 2, 8), (0, 2, 3)])
    bits(vT16, [(4, 1, 8), (5, 1, 10), (2, 1, 9), (3, 1, 11), (0, 2, 3)])
    vTd8, vT168 = vD8, vDx
    A(f"""s_lshl_b32 s{sT}, s{sW}, 5
    v_add_u32 v{vTd8}, s{sT}, v{vTd}
    v_add_u32 v{vT168}, s{sT}, v{vT16}
    v_add_u32 v{vTd}, s{sT}, v{vTd8}
    v_add_u32 v{vT16}, s{sT}, v{vT168}
    s_lshl_b32 s{sT}, s{sW}, 6
    v_add_u32 v{vTg}, s{sT}, v{vTg}""")
    GU = lambda m, gi, ks: ((m*2 + gi)*18 + ks)*4
    DN = lambda t, kk: 288 + (kk*9 + t)*4
    D16 = lambda t: 360 + 2*t
    rounds = []
    def mk(dma, va, lst):
        def rd(so):
            A(f"v_add_u32 v{t1}, {so}, v{va}")
            for (d, imm) in lst: A(f"ds_read_b64_tr_b16 {d}, v{t1} offset:{imm}")
        rounds.append(dict(dma=dma, reads=rd))
    ldsW = {}
    PK = lambda t, kk: ((kk-2)*9 + t)*4
    for y in range(5):
        nu = 2 if y < 4 else 1
        mk([(SR2, vDd, sWd, (64 + 4*q)*1152 + y*256, q*1024) for q in range(4)], vTd if y < 4 else vTd8,
           [(v(WK2 + PK(2*y+u, 2+h) + 2*yy, 2), h*8192 + yy*4096 + u*32) for h in range(2) for u in range(nu) for yy in range(2)])
    for r in range(9):
        for m, srd in enumerate((SR0, SR1)):
            mk([(srd, vDg, sGU, (64*r + 4*q)*9216, q*1024) for q in range(4)], vTg,
               [(W(GU(m, gi, 2*r+h) + 2*yy, 2), h*8192 + yy*1024 + gi*32) for h in range(2) for gi in range(2) for yy in range(2)])
    mk([(SR2, vDd, sMx, (128 + 4*q)*1152, q*1024) for q in range(4)], vT16,
       [(W(D16(2*y+u), 2), y*4096 + u*32) for y in range(4) for u in range(2)])
    mk([(SR2, vDd, sMx, (128 + 4*q)*1152 + 1024, q*1024) for q in range(4)], vT168, [(W(D16(8), 2), 0)])
    for y in range(5):
        nu = 2 if y < 4 else 1
        mk([(SR2, vDd, sWd, (4*q)*1152 + y*256, q*1024) for q in range(4)], vTd if y < 4 else vTd8,
           [(W(DN(2*y+u, h) + 2*yy, 2), h*8192 + yy*4096 + u*32) for h in range(2) for u in range(nu) for yy in range(2)])
    load_coop(A, rounds, 7, 16384, sLds, sT)
    for kk in (2, 3):
        for t_ in range(9):
            ldsW[(t_, kk)] = PK(t_, kk)*256
            A(f"ds_write_b128 v{vWL}, {v(WK2 + PK(t_, kk), 4)} offset:{ldsW[(t_, kk)]}")
            if t_ == 8: A("s_waitcnt lgkmcnt(0)")
    stamp(A, 1, WK)
    if common.FOFF == 2: A("s_endpgm")
    reduce_setup(A, bits, lane, t0, t1, SEL, vSa, vSb, vRa, vRb, vWa, vWb, vLa, vLb, vGa, vGb, L_R, L_E, sT)
    wait_counter(A, D_INIT, N_INIT, t0, vZ, sC, 0x41)
    wait_counter(A, D_MOD, 54, t0, vZ, sC, 0x42)
    A(f"s_mov_b32 s{sT}, {MOD+5*1152}")
    load9(A, GB, WK, vGa, vGb, WS, f"s{sT}", 0)
    A("s_waitcnt vmcnt(0)")
    unpack9(A, GB, WK)
    for i in range(9):
        A(f"""v_add_u32 v{t0}, {i*64}, v{lane}
        v_mul_u32_u24 v{t1}, 911, v{t0}
        v_lshrrev_b32 v{t1}, 17, v{t1}
        s_lshl_b32 s{sT}, s{sW}, 2
        v_add_u32 v{t1}, s{sT}, v{t1}
        v_and_b32 v{t1}, 7, v{t1}
        v_xor_b32 v{t0}, v{t0}, v{t1}
        v_lshlrev_b32 v{vDH+i}, 4, v{t0}""")
    bits(t1, [(0, 4, 0)])
    A(f"v_mul_u32_u24 v{vB[0]}, 1152, v{t1}")
    A(f"""v_bfe_u32 v{t0}, v{lane}, 1, 3
    v_bfe_u32 v{t1}, v{lane}, 4, 2
    v_xor_b32 v{t0}, v{t0}, v{t1}
    v_xor_b32 v{t1}, 4, v{t0}
    v_lshl_add_u32 v{vB[1]}, v{t1}, 4, v{vB[0]}
    v_lshl_add_u32 v{vB[0]}, v{t0}, 4, v{vB[0]}
    s_lshr_b32 s{sT}, s{sW}, 1
    s_xor_b32 s{sT2}, s{sT}, 1
    s_mul_i32 s{sC}, s{sT2}, 18432
    v_add_u32 v{vB[2]}, s{sC}, v{vB[0]}
    v_add_u32 v{vB[3]}, s{sC}, v{vB[1]}
    s_mul_i32 s{sC}, s{sT}, 18432
    v_add_u32 v{vB[0]}, s{sC}, v{vB[0]}
    v_add_u32 v{vB[1]}, s{sC}, v{vB[1]}""")
    bits(vOR, [(4, 2, 9), (0, 4, 4)])
    A(f"""s_lshl_b32 s{sC}, s{sW}, 11
    s_add_u32 s{sC}, s{sC}, {L_ACT}
    v_add_u32 v{vAW0}, s{sC}, v{vOR}
    s_lshl_b32 s{sC}, s{sT2}, 8
    v_add_u32 v{vAW1}, s{sC}, v{vAW0}
    s_lshl_b32 s{sC}, s{sT}, 8
    v_add_u32 v{vAW0}, s{sC}, v{vAW0}""")
    bits(vA16R, [(4, 2, 8), (0, 4, 3)])
    A(f"""s_lshl_b32 s{sC}, s{sT}, 7
    s_and_b32 s{sT2}, s{sW}, 1
    s_lshl_b32 s{sT}, s{sT2}, 2
    s_add_u32 s{sC}, s{sC}, s{sT}
    s_add_u32 s{sC}, s{sC}, {L_A16}
    v_add_u32 v{vA16W}, s{sC}, v{vA16R}
    s_lshl_b32 s{sC}, s{sT2}, 10
    s_add_u32 s{sC}, s{sC}, {L_MIX}
    v_add_u32 v{vMR}, s{sC}, v{vL16}
    s_mul_i32 s{sT}, s{sSUB}, 0x240000
    s_add_u32 s{sT}, s{sT}, {PF}
    s_mul_i32 s{sPF}, s{sCU}, 1152
    s_add_u32 s{sPF}, s{sPF}, s{sT}
    s_mul_i32 s{sPR}, s{sCU}, 36864
    s_add_u32 s{sPR}, s{sPR}, s{sT}
    s_mov_b32 s{sS}, s{sSUB}
    s_mul_i32 s{sLds}, s{sW}, 9216
    s_mov_b32 s{sN}, 0
    s_barrier""")
    stamp(A, 2, WK)
    sPre, sFl = 85, 86
    def seg_regs(delta):
        A(f"""s_add_u32 s{sT}, s{sS}, {delta}
        s_lshr_b32 s{sNeed}, s{sT}, 1
        s_add_u32 s{sNeed}, s{sNeed}, 1
        s_and_b32 s{sFl}, s{sT}, 1
        s_lshl_b32 s{sFl}, s{sFl}, 7
        s_add_u32 s{sFl}, s{sFl}, {FH2}
        s_mul_i32 s{sH}, s{sT}, 36864
        s_add_u32 s{sH}, s{sH}, s{sLds}
        s_add_u32 s{sH}, s{sH}, {H2}""")
    def dma_h():
        for i in range(9):
            A(f"s_add_u32 m0, s{sLds}, {i*1024}\n s_nop 0")
            A(f"buffer_load_dwordx4 v{vDH+i}, {WS}, s{sH} offen sc1 lds")
    seg_regs(0)
    A(f"s_mov_b32 s{sPre}, 0")
    A.label('L_F_LOOP')
    ta(0)
    A(f"""s_bfe_u32 s{sFF}, s{sN}, 0x10001
    s_mul_i32 s{sT}, s{sS}, 36864
    s_mul_i32 s{sRow}, s{sCU}, 1152
    s_add_u32 s{sRow}, s{sRow}, s{sT}
    s_cmp_lg_u32 s{sPre}, 0
    s_cbranch_scc1 L_F_HAVE""")
    poll_words(A, vFH, vL4, sFl, 0, sNeed, "lo32", sC, 0x43, False)
    ta(1)
    dma_h()
    A.label('L_F_HAVE')
    A("s_waitcnt vmcnt(0)\n s_barrier")
    ta(2)
    A(f"s_add_u32 s{sT}, s{sRow}, {X1}")
    load9(A, XR, XR, vGa, vGb, WS, f"s{sT}", 0)
    seg_regs(3)
    ACCG = lambda m, gi, sl: WK + ((m*2 + gi)*2 + sl)*4
    ACCM = WK + 32
    BF = WK + 36
    D = Cnt(A, 'lgkmcnt', 15)
    T = WK + 72
    def actpair(g, u, dst, T=T):
        o = []
        r2 = lambda x: [f"v_cvt_pk_bf16_f32 v{T}, v{x}, v{x+1}", f"v_lshlrev_b32 v{x}, 16, v{T}", f"v_and_b32 v{x+1}, 0xffff0000, v{T}"]
        o += r2(g) + r2(u)
        o += [f"v_mul_f32 v{T}, 0xbfb8aa3b, v{g}", f"v_mul_f32 v{T+1}, 0xbfb8aa3b, v{g+1}",
              f"v_exp_f32 v{T}, v{T}", f"v_exp_f32 v{T+1}, v{T+1}",
              f"v_add_f32 v{T}, 1.0, v{T}", f"v_add_f32 v{T+1}, 1.0, v{T+1}",
              f"v_rcp_f32 v{T}, v{T}", f"v_rcp_f32 v{T+1}, v{T+1}",
              f"v_mul_f32 v{g}, v{g}, v{T}", f"v_mul_f32 v{g+1}, v{g+1}, v{T+1}"]
        o += r2(g)
        o += [f"v_mul_f32 v{g}, v{g}, v{u}", f"v_mul_f32 v{g+1}, v{g+1}, v{u+1}", f"v_cvt_pk_bf16_f32 v{dst}, v{g}, v{g+1}"]
        return o
    for gi in range(2):
        def rd(ks):
            b = BF + (ks % 3)*12
            for sl in range(2): D.op(f"ds_read_b128 {v(b+4*sl,4)}, v{vB[sl*2+(ks&1)]} offset:{L_H+(ks>>1)*128}", (gi, ks))
            if gi == 0: D.op(f"ds_read_b128 {v(b+8,4)}, v{vMR} offset:{ks*2048}", (gi, ks))
        side = []
        if gi == 1:
            for sl in range(2):
                for hh in range(2): side += actpair(ACCG(0, 0, sl) + 2*hh, ACCG(1, 0, sl) + 2*hh, ACCG(0, 0, sl) + hh)
            side += [f"v_permlane16_swap_b32 v{ACCM}, v{ACCM+1}", f"v_permlane16_swap_b32 v{ACCM+2}, v{ACCM+3}",
                     f"v_mov_b32 v{T}, v{ACCM+1}", f"v_mov_b32 v{ACCM+1}, v{ACCM+2}", f"v_mov_b32 v{ACCM+2}, v{T}"]
            side += actpair(ACCM, ACCM+2, ACCM)
        if gi == 0: rd(0); rd(1)
        n = 0
        for ks in range(18):
            if ks + 2 < 18: rd(ks + 2)
            elif gi == 0:
                gi = 1; rd(ks + 2 - 18); gi = 0
            D.need((gi, ks))
            b = BF + (ks % 3)*12
            for m in range(2):
                for sl in range(2):
                    d = v(ACCG(m, gi, sl), 4)
                    A(f"v_mfma_f32_16x16x32_bf16 {d}, {W(GU(m,gi,ks),4)}, {v(b+4*sl,4)}, {'0' if ks == 0 else d}")
                    n += 1
                    if n > 4:
                        for _ in range(2):
                            if side: A(side.pop(0))
            if gi == 0:
                d = v(ACCM, 4)
                A(f"v_mfma_f32_16x16x32_bf16 {d}, {v(b+8,4)}, {v(b,4)}, {'0' if ks == 0 else d}")
            if gi == 1 and ks == 8:
                A(f"s_mov_b32 exec_hi, 0\n buffer_load_dword v{vFH}, v{vL4}, {WS}, s{sFl} offen sc1\n s_mov_b64 exec, -1")
        assert not side
    ta(3)
    A(f"ds_write_b32 v{vA16W}, v{ACCM}")
    A.nop(4)
    for sl in range(2):
        pa = actpair(ACCG(0, 1, sl), ACCG(1, 1, sl), ACCG(0, 0, sl) + 2, T)
        pb = actpair(ACCG(0, 1, sl) + 2, ACCG(1, 1, sl) + 2, ACCG(0, 0, sl) + 3, BF)
        for x, y in zip(pa, pb): A(x); A(y)
        A(f"ds_write_b128 v{vAW0 if sl == 0 else vAW1}, {v(ACCG(0, 0, sl),4)}")
    A(f"""s_waitcnt lgkmcnt(0) vmcnt(0)
    s_barrier
    s_mov_b32 s{sPre}, 0
    s_mov_b32 exec_hi, 0
    v_cmp_gt_u32 vcc, s{sNeed}, v{vFH}
    s_mov_b64 exec, -1
    s_cbranch_vccnz L_F_NOPRE
    s_mov_b32 s{sPre}, 1""")
    dma_h()
    A.label('L_F_NOPRE')
    ta(4)
    AF = WK + 36
    SG = WK + 56
    ACC = [[WK + 4*t for t in range(9)]]*2
    for tt in range(2):
        D.reset()
        for kk in range(4): D.op(f"ds_read_b128 {v(AF+4*kk,4)}, v{vOR} offset:{L_ACT+kk*2048+tt*256}", ('a', kk))
        D.op(f"ds_read_b64 {v(AF+16,2)}, v{vA16R} offset:{L_A16+tt*128}", ('a', 4))
        seq = [(t, kk) for kk in (2, 3) for t in range(9)]
        for i in range(4): D.op(f"ds_read_b128 {v(SG+4*i,4)}, v{vWL} offset:{ldsW[seq[i]]}", ('w', i))
        regseq = [(t, kk) for kk in (0, 1, 4) for t in range(9)]
        def rm(t, kk):
            d = v(ACC[tt][t], 4)
            D.need(('a', kk))
            if kk == 4: A(f"v_mfma_f32_16x16x16_bf16 {d}, {v(AF+16,2)}, {W(D16(t),2)}, {d}")
            else: A(f"v_mfma_f32_16x16x32_bf16 {d}, {v(AF+4*kk,4)}, {W(DN(t,kk),4)}, {'0' if kk == 0 else d}")
        for x in regseq[:9]: rm(*x)
        for i in range(18):
            t, kk = seq[i]
            d = v(ACC[tt][t], 4)
            D.need(('a', kk), ('w', i))
            A(f"v_mfma_f32_16x16x32_bf16 {d}, {v(AF+4*kk,4)}, {v(SG+4*(i%4),4)}, {d}")
            if i + 4 < 18: D.op(f"ds_read_b128 {v(SG+4*(i%4),4)}, v{vWL} offset:{ldsW[seq[i+4]]}", ('w', i+4))
            rm(*regseq[9 + (i + 4) % 18])
        A.nop(8)
        for r in range(4):
            for x in st_row(ACC, tt, r, SG + 8*(r & 1), vSa, vSb, sPF, sT, sFF): A(x)
    ta(5); ta(6)
    A(f"s_waitcnt vmcnt({common.FACK})")
    ta(7)
    reduce_row(A, WK, SEL, WK+36, vRa, vRb, sPR, sT, vWa, vWb, L_R, L_E, sFF, sC, 0x44, mid=lambda: A("s_barrier"))
    ta(8)
    A(f"""s_and_b32 s{sT}, s{sN}, 3
    s_cmp_lg_u32 s{sT}, s{sW}
    s_cbranch_scc1 L_F_NOLN""")
    Y = WK; E_ = WK+12; X9 = WK+24; TM = WK+40
    unpack9(A, X9, XR)
    read_sums(A, Y, E_, vLa, vLb, L_R, L_E)
    rnd9(A, Y, TM)
    op9(A, 'mul', Y, GB)
    rnd9(A, Y, TM)
    op9(A, 'add', Y, X9)
    store9(A, Y, TM+4, vGa, vGb, s(SR3,4), f"s{sRow}", sc='')
    A.label('L_F_NOLN')
    ta(9)
    A(f"""s_bitcmp1_b32 s{sN}, 0
    s_mov_b32 s{sT}, 0x120000
    s_cselect_b32 s{sT}, {(-0x120000) & 0xffffffff}, s{sT}
    s_add_u32 s{sPF}, s{sPF}, s{sT}
    s_add_u32 s{sPR}, s{sPR}, s{sT}
    s_add_u32 s{sN}, s{sN}, 1
    s_add_u32 s{sS}, s{sS}, 3
    s_cmp_lt_u32 s{sS}, 64
    s_cbranch_scc1 L_F_LOOP""")
    stamp(A, 3, WK+50)
    A("s_endpgm")
```

```python
import sys
from common import *
import common
from role_p import gen_P, arrive_init
from role_pro import gen_mod_ln1

HDR = open('cdna_kernels/%s.s.ref' % KNAME).read().split('; Override launch')[0]

def main(out, roles):
    A = Asm()
    if common.DEV: A("s_memrealtime s[94:95]")
    A(f"""s_cmp_ge_u32 s2, 256
    s_cbranch_scc1 L_END
    s_load_dwordx16 s[4:19], s[0:1], 0
    s_load_dwordx16 s[20:35], s[0:1], 64
    s_getreg_b32 s{sXCC}, hwreg(HW_REG_XCC_ID)
    v_lshrrev_b32 v1, 6, v0
    s_and_b32 s{sXCC}, s{sXCC}, 7
    s_lshl_b32 s{sXCC}, s{sXCC}, 2
    s_lshr_b32 s{sXCC}, {sum(x << (4*i) for i, x in enumerate(common.XMAP))}, s{sXCC}
    s_and_b32 s{sXCC}, s{sXCC}, 7
    v_readfirstlane_b32 s{sW}, v1
    v_and_b32 v0, 63, v0
    s_mov_b32 s{sERR}, 0
    s_mov_b32 s{sCU}, 0
    s_waitcnt lgkmcnt(0)""")
    mk_srd(A, SRD_WS, PWS, WS_SIZE); mk_srd(A, SRD_DBG, PDBG, 256)
    A(f"""v_mov_b32 v3, 0
    s_cmp_lg_u32 s{sW}, 0
    s_cbranch_scc1 L_TK
    s_mov_b32 s72, 0x40848000
    s_mov_b32 s73, 0xc8c4c044
    s_lshl_b32 s70, s{sXCC}, 3
    s_lshr_b64 s[72:73], s[72:73], s70
    s_and_b32 s70, s72, 0xff
    v_mov_b32 v1, 1
    v_mov_b32 v2, s70
    s_mov_b64 exec, 1
    buffer_atomic_add v1, v2, {DBG}, 0 offen sc0
    s_waitcnt vmcnt(0)
    ds_write_b32 v3, v1
    s_mov_b64 exec, -1
    s_waitcnt lgkmcnt(0)""")
    A.label('L_TK')
    code_touch(A, 'L_ABORT', 'L_CODE_END', 4, 5, 4)
    A(f"""s_barrier
    ds_read_b32 v1, v3
    s_waitcnt lgkmcnt(0)
    v_readfirstlane_b32 s{sCU}, v1
    s_barrier
    s_cmp_ge_u32 s{sCU}, 32
    s_cbranch_scc1 L_END""")
    stamp(A, 0, 1)
    if common.DEV: A(f"s_nop 1\n v_mov_b32 v1, s94\n buffer_store_dword v1, v2, {WS}, s96 offen offset:60")
    A(f"""s_cmp_eq_u32 s{sXCC}, 0
    s_cbranch_scc1 L_J_T
    s_sub_u32 s{sSUB}, s{sXCC}, 1
    s_cmp_lt_u32 s{sXCC}, 3
    s_cbranch_scc1 L_J_P
    s_sub_u32 s{sSUB}, s{sXCC}, 3
    s_cmp_lt_u32 s{sXCC}, 5
    s_cbranch_scc1 L_J_A
    s_sub_u32 s{sSUB}, s{sXCC}, 5
    s_branch L_ROLE_F""")
    for r in 'TPA':
        A.label(f'L_J_{r}'); A(f"s_branch L_ROLE_{r}")
    A.label('L_ABORT')
    A(f"""s_mov_b64 exec, 1
    v_mov_b32 v1, s{sERR}
    s_lshl_b32 s70, s{sXCC}, 2
    v_mov_b32 v2, s70
    buffer_store_dword v1, v2, {DBG}, 0 offen offset:{D_ERR}
    s_waitcnt vmcnt(0)""")
    A.label('L_END')
    A("s_endpgm")
    def stub(r):
        A.label(f'L_ROLE_{r}')
        A("v_mov_b32 v2, 0")
        arrive_init(A, 1, 2, 3 if r == 'T' else 1)
        A("s_endpgm")
    gens = {}
    gens['P'] = gen_P
    try:
        import importlib, os; gens['T'] = importlib.import_module(os.environ.get('RT', 'role_t')).gen_T
    except ImportError: pass
    try:
        from role_a import gen_A; gens['A'] = gen_A
    except ImportError:
        def ga(A):
            A.label('L_ROLE_A'); A("v_mov_b32 v2, 0"); arrive_init(A, 1, 2); gen_mod_ln1(A); A("s_endpgm")
        gens['A'] = ga
    try:
        from role_f import gen_F; gens['F'] = gen_F
    except ImportError: pass
    for r in 'TPAF':
        if r in roles and r in gens: gens[r](A)
        else: stub(r)
    A.label('L_CODE_END')
    A("s_endpgm")
    bad = check_hazards(A.lines)
    if common.ALIGN:
        from align import align
        print('aligned', align(A.lines), file=sys.stderr)
    print('hazards:', bad, 'lines:', len(A.lines), file=sys.stderr)
    txt = HDR + f"""; @launch grid=(256,1,1) block=(256,1,1) lds=163840
.amdgcn_target "amdgcn-amd-amdhsa--gfx950"
.text
.globl {KNAME}_kernel
.p2align 8
.type {KNAME}_kernel,@function
{KNAME}_kernel:
""" + A.text() + f""".section .rodata,"a"
.p2align 6
.amdhsa_kernel {KNAME}_kernel
  .amdhsa_next_free_vgpr 512
  .amdhsa_next_free_sgpr 102
  .amdhsa_accum_offset 256
  .amdhsa_group_segment_fixed_size 0
  .amdhsa_kernarg_size 128
  .amdhsa_user_sgpr_count 2
  .amdhsa_user_sgpr_kernarg_segment_ptr 1
  .amdhsa_system_sgpr_workgroup_id_x 1
  .amdhsa_float_denorm_mode_32 3
.end_amdhsa_kernel
"""
    open(out, 'w').write(txt)
    return bad

if __name__ == '__main__':
    out = sys.argv[1] if len(sys.argv) > 1 else 'k.s'
    roles = sys.argv[2] if len(sys.argv) > 2 else 'TPAF'
    if len(sys.argv) > 3 and sys.argv[3] == 'final': common.DEV = False
    for kv in sys.argv[3:]:
        if '=' in kv:
            k_, v_ = kv.split('='); setattr(common, k_, eval(v_))
    main(out, roles)
```

```python
from common import *
import common
from role_p import arrive_init
from role_pro import gen_mod_ln1, ln_core

SCALE = 0x3db504f3
LOG2E = 0x3fb8aa3b

def mkbits(A, lane, tmp):
    def bits(dst, spec, acc=False):
        first = not acc
        for (lo, n, sh) in spec:
            A(f"v_bfe_u32 v{tmp}, v{lane}, {lo}, {n}")
            if first: A(f"v_lshlrev_b32 v{dst}, {sh}, v{tmp}"); first = False
            else: A(f"v_lshl_add_u32 v{dst}, v{tmp}, {sh}, v{dst}")
    return bits

def red64(A, x, t):
    for m in ("quad_perm:[1,0,3,2]", "quad_perm:[2,3,0,1]", "row_half_mirror", "row_mirror"):
        A.nop(2)
        A(f"v_add_f32_dpp v{x}, v{x}, v{x} {m} row_mask:0xf bank_mask:0xf")
    for p in ("16", "32"):
        A(f"v_mov_b32 v{t}, v{x}")
        A.nop(2)
        A(f"v_permlane{p}_swap_b32 v{x}, v{t}")
        A(f"v_add_f32 v{x}, v{x}, v{t}")

def poll_words(A, vdst, vaddr, soff, imm, sneed, mask, sC, err, sknown=None, anyof=False):
    l0 = A.newlab('PW'); l1 = A.newlab('PWD')
    if mask == 'lo32': A("s_mov_b32 exec_hi, 0")
    else: A(f"s_mov_b64 exec, {mask}")
    cmpb = f"v_cmp_le_u32 vcc, s{sneed}, v{vdst}\n s_cbranch_vccnz {l1}" if anyof else f"v_cmp_gt_u32 vcc, s{sneed}, v{vdst}\n s_cbranch_vccz {l1}"
    if sknown: A(cmpb)
    A(f"s_mov_b32 s{sC}, {SPIN}")
    A.label(l0)
    A(f"""buffer_load_dword v{vdst}, v{vaddr}, {WS}, s{soff} offen offset:{imm} sc1
    s_waitcnt vmcnt(0)
    {cmpb}
    s_sleep {common.PSLEEP}
    s_sub_u32 s{sC}, s{sC}, 1
    s_cmp_lg_u32 s{sC}, 0
    s_cbranch_scc1 {l0}
    s_mov_b32 s{sERR}, {err}
    s_branch L_ABORT""")
    A.label(l1)
    A("s_mov_b64 exec, -1")

def gemm2_store(A, ACC, vSa, vSb, sbase, sT, TMP):
    for tt in range(2):
        for r in range(4):
            t = TMP + 8*((tt*4 + r) & 1)
            for y in range(4):
                A(f"v_cvt_pk_bf16_f32 v{t+y}, v{ACC[tt][2*y]+r}, v{ACC[tt][2*y+1]+r}")
            A(f"v_cvt_pk_bf16_f32 v{t+4}, v{ACC[tt][8]+r}, v{ACC[tt][8]+r}")
            A(f"s_add_u32 s{sT}, s{sbase}, {(16*tt + r)*36864}")
            A(f"buffer_store_dwordx4 {v(t,4)}, v{vSa}, {WS}, s{sT} offen")
            A(f"buffer_store_short v{t+4}, v{vSb}, {WS}, s{sT} offen")

def reduce_row(A, PL, SEL, RD, vRa, vRb, sbase, sT, vWa, vWb, L_R, L_E, sTagN, sC, err, mid=None):
    l0 = A.newlab('RR'); l1 = A.newlab('RRC'); l2 = A.newlab('RRO')
    def loads():
        for i in range(8):
            A(f"s_add_u32 s{sT}, s{sbase}, {i*4*1152}")
            A(f"buffer_load_dwordx4 {v(PL+4*i,4)}, v{vRa}, {WS}, s{sT} offen sc1")
        A(f"buffer_load_dwordx4 {v(PL+32,4)}, v{vRb}, {WS}, s{sbase} offen sc1")
    loads()
    A(f"s_mov_b32 s{sC}, {SPIN}")
    if mid: mid()
    A(f"s_branch {l1}")
    A.label(l0)
    A(f"""s_sub_u32 s{sC}, s{sC}, 1
    s_cmp_lg_u32 s{sC}, 0
    s_cbranch_scc1 {l2}
    s_mov_b32 s{sERR}, {err}
    s_branch L_ABORT""")
    A.label(l2)
    loads()
    A.label(l1)
    G = RD + 8
    for i in range(8):
        A(f"s_waitcnt vmcnt({8-i})")
        A(f"v_mfma_f32_16x16x32_bf16 {v(RD,4)}, {v(SEL,4)}, {v(PL+4*i,4)}, {'0' if i == 0 else v(RD,4)}")
        if i == 0: A(f"v_xor_b32 v{G}, s{sTagN}, v{PL}")
        else: A(f"v_bitop3_b32 v{G}, v{G}, v{PL+4*i}, s{sTagN} bitop3:0xf6")
    A("s_waitcnt vmcnt(0)")
    A(f"v_mfma_f32_16x16x32_bf16 {v(RD+4,4)}, {v(SEL,4)}, {v(PL+32,4)}, 0")
    A(f"""v_bitop3_b32 v{G}, v{G}, v{PL+32}, s{sTagN} bitop3:0xf6
    v_and_b32 v{G}, 1, v{G}
    v_cmp_ne_u32 vcc, 0, v{G}
    s_cbranch_vccnz {l0}""")
    A.nop(1)
    A(f"ds_write2_b32 v{vWa}, v{RD}, v{RD+1} offset0:0 offset1:16")
    A.nop(2)
    A(f"ds_write_b64 v{vWb}, {v(RD+4,2)}")
    A("s_waitcnt lgkmcnt(0)\n s_barrier")

def init_rows(A, vL16, tmp, sbase, sT):
    for q in range(4): A(f"v_mov_b32 v{tmp+q}, -1")
    A(f"s_mul_i32 s{sT}, s{sW}, 9216\n s_add_u32 s{sT}, s{sT}, s{sbase}")
    for b in range(2):
        for i in range(9):
            A(f"buffer_store_dwordx4 {v(tmp,4)}, v{vL16}, {WS}, s{sT} offen offset:{(i%3)*1024}")
            if i % 3 == 2: A(f"s_add_u32 s{sT}, s{sT}, {3072 if i < 8 else 0x120000 - 6144}")

def st_row(ACC, tt, r, tmp, vSa, vSb, sbase, sT, sTag):
    out = [f"v_cvt_pk_bf16_f32 v{tmp+y}, v{ACC[tt][2*y]+r}, v{ACC[tt][2*y+1]+r}" for y in range(4)]
    out += [f"v_cvt_pk_bf16_f32 v{tmp+4}, v{ACC[tt][8]+r}, v{ACC[tt][8]+r}",
            f"v_and_or_b32 v{tmp}, v{tmp}, -2, s{sTag}",
            f"v_and_or_b32 v{tmp+4}, v{tmp+4}, -2, s{sTag}",
            f"s_add_u32 s{sT}, s{sbase}, {(16*tt + r)*36864}",
            f"buffer_store_dwordx4 {v(tmp,4)}, v{vSa}, {WS}, s{sT} offen",
            f"buffer_store_short v{tmp+4}, v{vSb}, {WS}, s{sT} offen"]
    return out

def ln9(A, Y, T):
    S, Q, M, Cc, U = T, T+1, T+2, T+4, T+6
    A(f"s_nop 0\n v_readfirstlane_b32 s97, v{Y}")
    A.nop(2)
    for i in range(9):
        A(f"v_subrev_f32 v{U}, s97, v{Y+i}")
        if i == 0: A(f"v_mov_b32 v{S}, v{U}\n v_mul_f32 v{Q}, v{U}, v{U}")
        else: A(f"v_add_f32 v{S}, v{S}, v{U}\n v_fmac_f32 v{Q}, v{U}, v{U}")
    A.nop(1)
    for m in ("quad_perm:[1,0,3,2]", "quad_perm:[2,3,0,1]", "row_half_mirror", "row_mirror"):
        A(f"v_add_f32_dpp v{S}, v{S}, v{S} {m} row_mask:0xf bank_mask:0xf")
        A(f"v_add_f32_dpp v{Q}, v{Q}, v{Q} {m} row_mask:0xf bank_mask:0xf")
        A.nop(1)
    for p_ in ("16", "32"):
        A(f"v_mov_b64 {v(U,2)}, {v(S,2)}")
        A.nop(2)
        A(f"v_permlane{p_}_swap_b32 v{S}, v{U}\n v_permlane{p_}_swap_b32 v{Q}, v{U+1}")
        A(f"v_pk_add_f32 {v(S,2)}, {v(S,2)}, {v(U,2)}")
    A(f"""v_mul_f32 v{S}, 0x3ae38e39, v{S}
    v_mul_f32 v{Q}, 0x3ae38e39, v{Q}
    v_fma_f32 v{Q}, -v{S}, v{S}, v{Q}
    v_max_f32 v{Q}, 0, v{Q}
    v_add_f32 v{M}, s97, v{S}""")
    rnd2(A, M, Q, M, Q, U)
    A(f"v_add_f32 v{Q}, 0x3727c5ac, v{Q}")
    rnd1(A, Q, Q)
    A(f"v_sqrt_f32 v{Q}, v{Q}")
    for i in range(0, 8, 2): A(f"v_pk_add_f32 {v(Y+i,2)}, {v(Y+i,2)}, {v(M,2)} op_sel_hi:[1,0] neg_lo:[0,1] neg_hi:[0,1]")
    A(f"v_sub_f32 v{Y+8}, v{Y+8}, v{M}")
    rnd1(A, Q, Q)
    A(f"v_rcp_f32 v{Cc}, v{Q}")
    rnd9(A, Y, U)
    op9(A, 'mul', Y, Cc, bc=True)
    rnd9(A, Y, U)

def op9(A, op, Y, B, bc=False):
    for i in range(0, 8, 2):
        A(f"v_pk_{op}_f32 {v(Y+i,2)}, {v(Y+i,2)}, {v(B if bc else B+i,2)}" + (" op_sel_hi:[1,0]" if bc else ""))
    A(f"v_{op}_f32 v{Y+8}, v{Y+8}, v{B if bc else B+8}")

def reduce_setup(A, bits, lane, t0, t1, SEL, vSa, vSb, vRa, vRb, vWa, vWb, vLa, vLb, vGa, vGb, L_R, L_E, sT):
    A(f"""v_and_b32 v{t0}, 1, v{lane}
    v_lshlrev_b32 v{t0}, 4, v{t0}
    v_mov_b32 v{t1}, 0x3f80
    v_lshlrev_b32 v{t1}, v{t0}, v{t1}
    v_bfe_u32 v{t0}, v{lane}, 2, 2""")
    for q in range(4):
        A(f"""v_cmp_eq_u32 vcc, {q}, v{t0}
        s_nop 1
        v_cndmask_b32 v{SEL+q}, 0, v{t1}, vcc""")
    bits(t1, [(4, 2, 0)])
    A(f"s_mov_b32 s{sT}, {4*36864}\n v_mul_lo_u32 v{vSa}, s{sT}, v{t1}\n v_mov_b32 v{vSb}, v{vSa}")
    bits(vSa, [(0, 4, 4)], acc=True); bits(vSb, [(0, 4, 1)], acc=True)
    A(f"""s_lshl_b32 s{sT}, s{sW}, 8
    v_add_u32 v{vSa}, s{sT}, v{vSa}
    s_lshl_b32 s{sT}, s{sW}, 5
    s_add_u32 s{sT}, s{sT}, 1024
    v_add_u32 v{vSb}, s{sT}, v{vSb}""")
    bits(t1, [(4, 2, 0)])
    A(f"v_mul_u32_u24 v{vRa}, 1152, v{t1}")
    bits(vRa, [(0, 4, 4)], acc=True)
    A(f"s_lshl_b32 s{sT}, s{sW}, 8\n v_add_u32 v{vRa}, s{sT}, v{vRa}")
    bits(t1, [(3, 3, 0)])
    A(f"v_mul_u32_u24 v{vRb}, 1152, v{t1}")
    bits(vRb, [(0, 3, 4)], acc=True)
    A(f"s_mul_i32 s{sT}, s{sW}, {8*1152}\n s_add_u32 s{sT}, s{sT}, 1024\n v_add_u32 v{vRb}, s{sT}, v{vRb}")
    bits(vWa, [(4, 2, 9), (0, 4, 2)])
    A(f"s_lshl_b32 s{sT}, s{sW}, 7\n s_add_u32 s{sT}, s{sT}, {L_R}\n v_add_u32 v{vWa}, s{sT}, v{vWa}")
    bits(vWb, [(3, 1, 8), (0, 3, 5), (4, 2, 3)])
    A(f"s_lshl_b32 s{sT}, s{sW}, 9\n s_add_u32 s{sT}, s{sT}, {L_E}\n v_add_u32 v{vWb}, s{sT}, v{vWb}")
    A(f"v_lshlrev_b32 v{vLa}, 5, v{lane}\n v_lshlrev_b32 v{vLb}, 2, v{lane}")
    A(f"v_lshlrev_b32 v{vGa}, 4, v{lane}\n v_lshlrev_b32 v{vGb}, 1, v{lane}\n v_add_u32 v{vGb}, 1024, v{vGb}")

def load9(A, dst, tmp, vGa, vGb, srd, soff, imm, sc='sc1'):
    A(f"buffer_load_dwordx4 {v(tmp,4)}, v{vGa}, {srd}, {soff} offen offset:{imm} {sc}")
    A(f"buffer_load_ushort v{tmp+4}, v{vGb}, {srd}, {soff} offen offset:{imm} {sc}")
def unpack9(A, dst, tmp):
    for d in range(4):
        A(f"v_lshlrev_b32 v{dst+2*d}, 16, v{tmp+d}\n v_and_b32 v{dst+2*d+1}, 0xffff0000, v{tmp+d}")
    A(f"v_lshlrev_b32 v{dst+8}, 16, v{tmp+4}")
def rnd9(A, r, t):
    for d in range(4): rnd2(A, r+2*d, r+2*d+1, r+2*d, r+2*d+1, t)
    rnd1(A, r+8, r+8)
def store9(A, r, tmp, vGa, vGb, srd, soff, sc='sc1'):
    for d in range(4): A(f"v_cvt_pk_bf16_f32 v{tmp+d}, v{r+2*d}, v{r+2*d+1}")
    A(f"v_cvt_pk_bf16_f32 v{tmp+4}, v{r+8}, v{r+8}")
    A(f"buffer_store_dwordx4 {v(tmp,4)}, v{vGa}, {srd}, {soff} offen {sc}")
    A(f"buffer_store_short v{tmp+4}, v{vGb}, {srd}, {soff} offen {sc}")
def read_sums(A, Y, E, vLa, vLb, L_R, L_E):
    A(f"ds_read_b128 {v(Y,4)}, v{vLa} offset:{L_R}\n ds_read_b128 {v(Y+4,4)}, v{vLa} offset:{L_R+16}")
    for i in range(8): A(f"ds_read_b32 v{E+i}, v{vLb} offset:{L_E+256*i}")
    A("s_waitcnt lgkmcnt(0)")
    for st in (4, 2):
        for i in range(st): A(f"v_add_f32 v{E+i}, v{E+i}, v{E+i+st}")
    A(f"v_add_f32 v{Y+8}, v{E}, v{E+1}")

def gen_A(A):
    A.label('L_ROLE_A')
    def ta(i):
        if common.DEV and common.TS:
            l = A.newlab('TA')
            A(f"s_cmp_lg_u32 s{sN}, 20\n s_cbranch_scc1 {l}")
            stamp(A, 4+i, 254)
            A.label(l)
    sT, sC, sN, sLds, sWo, sQKV, sEX, sFP, sFTo, sPA, sPR, sFA, sFH, sRow, sNeed, sT2 = range(74, 90)
    lane, t0, t1, vZ = 0, 1, 2, 3
    A(f"""v_mov_b32 v{vZ}, 0
    s_lshl_b32 s{sT}, s{sSUB}, 7
    s_lshl_b32 s{sT2}, s{sCU}, 2
    s_add_u32 s{sFA}, s{sT}, {FA}
    s_add_u32 s{sT}, s{sT}, s{sT2}
    s_add_u32 s{sFH}, s{sT}, {FH2}
    s_add_u32 s{sT}, s{sT}, {FA}
    buffer_store_dword v{vZ}, v{vZ}, {WS}, s{sT} offen
    buffer_store_dword v{vZ}, v{vZ}, {WS}, s{sFH} offen sc1""")
    A(f"""s_mul_i32 s{sT}, s{sSUB}, 0x240000
    s_mul_i32 s{sPR}, s{sCU}, 36864
    s_add_u32 s{sPR}, s{sPR}, s{sT}
    s_add_u32 s{sPR}, s{sPR}, {PA}""")
    gen_mod_ln1(A)
    A(f"v_lshlrev_b32 v4, 4, v0")
    init_rows(A, 4, 8, sPR, sT)
    A("s_waitcnt vmcnt(0)\n s_barrier")
    A(f"v_mov_b32 v{vZ}, 0")
    arrive_init(A, t0, vZ)
    stamp(A, 1, 2)
    if common.AOFF: A("s_endpgm")
    A("s_barrier")
    bits = mkbits(A, lane, t0)
    mk_srd(A, SR3, PWO, 4096*1152)
    vDm, vD8, vTr, vL16, vFP, vFT, vFA, vL4, vKW, vVW, vVR, vKR, vOW, vOR = range(4, 18)
    vSa, vSb, vRa, vRb, vWa, vWb, vLa, vLb, vGa, vGb = range(18, 28)
    SEL = 28; GA = 32; CB = 42; SBv = 52
    vTok = 61
    QF = 64; KF = 96; VF = 128; SX = 136; SMm = 152; OO = 168; KMF = 184; TM = 216
    L_KM = 0; L_VM = 2048; L_OO = 4096; L_R = 12288; L_E = 14336; L_ST = 16384; L_RDY = 0xF000
    A(f"v_mov_b32 v{vZ}, 0")
    bits(t1, [(4, 2, 0)])
    A(f"v_mul_u32_u24 v{vDm}, 1152, v{t1}")
    bits(vDm, [(0, 4, 4)], acc=True)
    A(f"""s_lshl_b32 s{sLds}, s{sW}, 13
    s_mul_i32 s{sWo}, s{sCU}, {128*1152}
    s_mul_i32 s{sT}, s{sW}, {32*1152}
    s_add_u32 s{sWo}, s{sWo}, s{sT}""")
    bits(vTr, [(5, 1, 12), (4, 1, 10), (2, 2, 8), (0, 2, 3)])
    A(f"s_lshl_b32 s{sT}, s{sW}, 5\n v_add_u32 v{vD8}, s{sT}, v{vTr}\n v_add_u32 v{vTr}, s{sT}, v{vD8}")
    WF = lambda t, kk: (t*4 + kk)*4
    rounds = []
    for y in range(5):
        def rd(so, y=y):
            A(f"v_add_u32 v{t1}, {so}, v{vTr if y < 4 else vD8}")
            for kk in range(4):
                for u in range(2 if y < 4 else 1):
                    for yy in range(2): A(f"ds_read_b64_tr_b16 {a(WF(2*y+u, kk) + 2*yy, 2)}, v{t1} offset:{kk*8192 + yy*2048 + u*32}")
                A("s_waitcnt lgkmcnt(8)")
        rounds.append(dict(dma=[(SR3, vDm, sWo, 4*q*1152 + y*256, q*1024) for q in range(8)], reads=rd))
    load_coop(A, rounds, 5, 32768, sLds, sT)
    reduce_setup(A, bits, lane, t0, t1, SEL, vSa, vSb, vRa, vRb, vWa, vWb, vLa, vLb, vGa, vGb, L_R, L_E, sT)
    A(f"s_mov_b32 s{sT}, {MOD+2*1152}")
    load9(A, GA, TM, vGa, vGb, WS, f"s{sT}", 0); load9(A, SBv, TM+8, vGa, vGb, WS, f"s{sT}", 1152); load9(A, CB, TM+16, vGa, vGb, WS, f"s{sT}", 2304)
    A("s_waitcnt vmcnt(0)")
    unpack9(A, GA, TM); unpack9(A, SBv, TM+8); unpack9(A, CB, TM+16)
    for i in range(9): A(f"v_add_f32 v{CB+i}, 1.0, v{CB+i}")
    rnd9(A, CB, TM)
    A(f"""v_lshlrev_b32 v{vL16}, 4, v{lane}
    v_lshlrev_b32 v{vL4}, 2, v{lane}
    v_mov_b32 v{vFP}, 0
    v_mov_b32 v{vFT}, 0""")
    bits(vKW, [(3, 1, 8), (1, 1, 7), (4, 2, 5), (0, 1, 3), (2, 1, 2)])
    A(f"s_lshl_b32 s{sT}, s{sW}, 9\n v_add_u32 v{vKW}, s{sT}, v{vKW}")
    bits(vVW, [(0, 4, 4), (4, 2, 2)])
    A(f"s_add_u32 s{sT}, s{sT}, {L_VM}\n v_add_u32 v{vVW}, s{sT}, v{vVW}")
    bits(vVR, [(0, 5, 4), (5, 1, 3)])
    A(f"v_add_u32 v{vVR}, s{sT}, v{vVR}")
    bits(vKR, [(5, 1, 7), (0, 3, 4)])
    A(f"s_lshl_b32 s{sT}, s{sW}, 11\n s_add_u32 s{sT}, s{sT}, {L_OO}\n v_add_u32 v{vOW}, s{sT}, v{vL16}")
    bits(vOR, [(4, 2, 9), (0, 4, 4)])
    A(f"""v_and_b32 v{vTok}, 31, v{lane}
    v_bfe_u32 v{t0}, v{lane}, 5, 1
    v_lshlrev_b32 v{t0}, 2, v{t0}
    v_sub_u32 v{vTok}, v{vTok}, v{t0}
    s_lshl_b32 s{sQKV}, s{sSUB}, 5
    s_add_u32 s{sQKV}, s{sQKV}, s{sCU}
    s_lshl_b32 s{sFP}, s{sCU}, 7
    s_lshl_b32 s{sEX}, s{sQKV}, 12
    s_mul_i32 s{sRow}, s{sQKV}, 1152
    s_lshl_b32 s{sQKV}, s{sQKV}, 13
    s_lshl_b32 s{sT}, s{sW}, 10
    s_add_u32 s{sEX}, s{sEX}, s{sT}
    s_add_u32 s{sEX}, s{sEX}, {KM}
    s_lshl_b32 s{sFTo}, s{sCU}, 7
    s_add_u32 s{sFTo}, s{sFTo}, {FT}
    s_mul_i32 s{sT}, s{sSUB}, 0x240000
    s_add_u32 s{sT}, s{sT}, {PA}
    s_mul_i32 s{sPA}, s{sCU}, 1152
    s_add_u32 s{sPA}, s{sPA}, s{sT}
    s_mul_i32 s{sPR}, s{sCU}, 36864
    s_add_u32 s{sPR}, s{sPR}, s{sT}
    s_mov_b32 s{sN}, 0""")
    wait_counter(A, D_INIT, N_INIT, t0, vZ, sC, 0x31)
    A("s_barrier")
    stamp(A, 2, TM)
    MK = lambda r: s(4 + 2*r, 2)
    for r in range(16):
        A(f"v_cmp_le_i32 {MK(r)}, {(r & 3) + 8*(r >> 2)}, v{vTok}")
    vQR = vTok
    sBuf = 90
    def dma_qkv():
        A(f"s_lshl_b32 s{sT2}, s{sW}, 11\n s_add_u32 s{sC}, s{sBuf}, s{sT2}\n s_add_u32 s{sT2}, s{sT2}, s{sQKV}")
        for m, base in enumerate((KB, QB, VB)):
            A(f"s_add_u32 m0, s{sC}, {m*8192}\n s_add_u32 s{sT}, s{sT2}, {base}")
            for j in range(2): A(f"buffer_load_dwordx4 v{vL16}, {WS}, s{sT} offen offset:{j*1024} sc1 lds")
        A(f"s_add_u32 s{sQKV}, s{sQKV}, {64*8192}\n s_xor_b32 s{sBuf}, s{sBuf}, 0x8000")
    A(f"s_mov_b32 s{sBuf}, 0x10000\n v_add_u32 v{vQR}, 0x10000, v{vL16}\n s_add_u32 s{sNeed}, s{sSUB}, 1")
    poll_words(A, vFP, vL16, sFP, FP, sNeed, "0xff", sC, 0x32, True)
    dma_qkv()
    A("s_waitcnt vmcnt(0)\n s_barrier")
    MXv = TM+4; XR = TM+8
    def rscale(r, n):
        for i in range(0, n, 2):
            rnd2(A, r+i, r+i+1, r+i, r+i+1, TM)
            A(f"v_mul_f32 v{r+i}, s{sT}, v{r+i}\n v_mul_f32 v{r+i+1}, s{sT}, v{r+i+1}")
            rnd2(A, r+i, r+i+1, r+i, r+i+1, TM)
    def prework():
        for ks in range(8):
            A(f"ds_read_b128 {v(KF+4*ks,4)}, v{vQR} offset:{ks*1024}")
            A(f"ds_read_b128 {v(QF+4*ks,4)}, v{vQR} offset:{8192+ks*1024}")
            if ks >= 6:
                A(f"s_waitcnt lgkmcnt(12)")
                A(f"v_mfma_f32_32x32x16_bf16 {v(SX,16)}, {v(KF+4*(ks-6),4)}, {v(QF+4*(ks-6),4)}, {'0' if ks == 6 else v(SX,16)}")
        A(f"s_lshl_b32 s{sT}, s{sW}, 11\n v_add_u32 v{t0}, s{sT}, v{vQR}")
        for j in range(2): A(f"ds_read_b128 {v(VF+4*j,4)}, v{t0} offset:{16384+j*1024}")
        for ks in range(2, 8):
            A(f"s_waitcnt lgkmcnt({14-2*(ks-1)})")
            A(f"v_mfma_f32_32x32x16_bf16 {v(SX,16)}, {v(KF+4*ks,4)}, {v(QF+4*ks,4)}, {v(SX,16)}")
        A(f"v_xor_b32 v{vQR}, 0x8000, v{vQR}")
    def prework2():
        A(f"s_mov_b32 s{sT}, {SCALE}")
        rscale(SX, 16)
    def prework3():
        A(f"v_mov_b32 v{TM+2}, 0xce6e6b28")
        for r in range(16): A(f"v_cndmask_b32 v{SX+r}, v{TM+2}, v{SX+r}, {MK(r)}")
        A(f"v_max3_f32 v{MXv}, v{SX}, v{SX+1}, v{SX+2}")
        for r in range(3, 15, 2): A(f"v_max3_f32 v{MXv}, v{MXv}, v{SX+r}, v{SX+r+1}")
        A(f"v_max_f32 v{MXv}, v{MXv}, v{SX+15}")
    sPend = 91
    def flush_fh2(cnt=0):
        l = A.newlab('FH')
        A(f"""s_cmp_eq_u32 s{sPend}, 0
        s_cbranch_scc1 {l}
        s_waitcnt vmcnt({cnt})
        v_mov_b32 v{t0}, s{sPend}
        s_mov_b64 exec, 1
        buffer_store_dword v{t0}, v{vZ}, {WS}, s{sFH} offen sc1
        s_mov_b64 exec, -1
        s_mov_b32 s{sPend}, 0""")
        A.label(l)
    A(f"s_mov_b32 s{sPend}, 0\n ds_write_b32 v{vZ}, v{vZ} offset:{L_RDY}")
    def exfetch(delta):
        A(f"""s_mov_b64 exec, 3
        buffer_load_dword v{vFT}, v{vL4}, {WS}, s{sFTo} offen sc1
        s_mov_b64 exec, -1
        s_add_u32 s{sT2}, s{sEX}, {delta}
        buffer_load_dwordx4 {v(TM+20,4)}, v{vL16}, {WS}, s{sT2} offen sc1""")
    prework(); A.nop(10); prework2(); prework3()
    A.label('L_A_LOOP')
    ta(0)
    A(f"s_lshl_b32 s{sNeed}, s{sN}, 1\n s_add_u32 s{sNeed}, s{sNeed}, s{sSUB}\n s_add_u32 s{sNeed}, s{sNeed}, 1")
    A(f"""s_mov_b32 s{sC}, {SPIN}
    s_waitcnt vmcnt(4)
    s_cmp_lg_u32 s{sPend}, 0
    s_cbranch_scc1 L_A_EXC""")
    A.label('L_A_EXP')
    A("s_waitcnt vmcnt(0)")
    A.label('L_A_EXC')
    A(f"""s_mov_b64 exec, 3
    v_cmp_le_u32 vcc, s{sNeed}, v{vFT}
    s_mov_b64 exec, -1
    s_cbranch_vccnz L_A_EXOK""")
    flush_fh2()
    A(f"s_sleep {common.PSLEEP}")
    exfetch(0)
    A(f"""s_sub_u32 s{sC}, s{sC}, 1
    s_cmp_lg_u32 s{sC}, 0
    s_cbranch_scc1 L_A_EXP
    s_mov_b32 s{sERR}, 0x33
    s_branch L_ABORT""")
    A.label('L_A_EXOK')
    ta(1)
    A(f"""ds_write2_b32 v{vKW}, v{TM+20}, v{TM+21} offset0:0 offset1:4
    ds_write2_b32 v{vVW}, v{TM+22}, v{TM+23} offset0:0 offset1:64""")
    A("s_waitcnt lgkmcnt(0)\n s_barrier")
    ta(2)
    for ks in range(8): A(f"ds_read_b128 {v(KMF+4*ks,4)}, v{vKR} offset:{L_KM+ks*256}")
    VMf = TM+16
    A(f"ds_read_b64 {v(VMf,2)}, v{vVR}")
    for ks in range(8):
        A(f"s_waitcnt lgkmcnt({8-ks})")
        A(f"v_mfma_f32_32x32x16_bf16 {v(SMm,16)}, {v(KMF+4*ks,4)}, {v(QF+4*ks,4)}, {'0' if ks == 0 else v(SMm,16)}")
    A(f"s_cmp_eq_u32 s{sN}, 31\n s_cbranch_scc1 L_A_NODMA\n s_add_u32 s{sNeed}, s{sNeed}, 2")
    poll_words(A, vFP, vL16, sFP, FP, sNeed, "0xff", sC, 0x32, True)
    dma_qkv()
    A.label('L_A_NODMA')
    load9(A, XR, XR, vGa, vGb, s(SR0,4), f"s{sRow}", 0, sc='')
    A(f"s_mov_b32 s{sT}, {SCALE}")
    A.nop(7)
    rscale(SMm, 4)
    A(f"""v_max3_f32 v{MXv}, v{MXv}, v{SMm}, v{SMm+1}
    v_max3_f32 v{MXv}, v{MXv}, v{SMm+2}, v{SMm+3}
    v_mov_b32 v{MXv+1}, v{MXv}
    s_mov_b32 s{sT}, {LOG2E}
    s_nop 0
    v_permlane32_swap_b32 v{MXv}, v{MXv+1}
    v_max_f32 v{MXv}, v{MXv}, v{MXv+1}
    v_mul_f32 v{MXv}, s{sT}, v{MXv}""")
    vals = [SX+i for i in range(16)] + [SMm+i for i in range(4)]
    for r in vals: A(f"v_fma_f32 v{r}, v{r}, s{sT}, -v{MXv}")
    for r in vals: A(f"v_exp_f32 v{r}, v{r}")
    PP = KMF
    for i in range(10): A(f"v_cvt_pk_bf16_f32 v{PP+i}, v{vals[2*i]}, v{vals[2*i+1]}")
    A("s_waitcnt lgkmcnt(0)")
    Zr = TM+6
    A(f"v_add_f32 v{Zr}, v{vals[0]}, v{vals[1]}")
    A(f"v_mfma_f32_32x32x16_bf16 {v(OO,16)}, {v(VF,4)}, {v(PP,4)}, 0")
    for r in vals[2:4]: A(f"v_add_f32 v{Zr}, v{Zr}, v{r}")
    A(f"v_mfma_f32_32x32x16_bf16 {v(OO,16)}, {v(VF+4,4)}, {v(PP+4,4)}, {v(OO,16)}")
    for r in vals[4:14]: A(f"v_add_f32 v{Zr}, v{Zr}, v{r}")
    A(f"v_mfma_f32_32x32x8_bf16 {v(OO,16)}, {v(VMf,2)}, {v(PP+8,2)}, {v(OO,16)}")
    for r in vals[14:]: A(f"v_add_f32 v{Zr}, v{Zr}, v{r}")
    A(f"""v_mov_b32 v{Zr+1}, v{Zr}
    s_nop 1
    v_permlane32_swap_b32 v{Zr}, v{Zr+1}
    v_add_f32 v{Zr}, v{Zr}, v{Zr+1}
    v_rcp_f32 v{Zr}, v{Zr}
    s_nop 0""")
    for r in range(0, 16, 2): A(f"v_pk_mul_f32 {v(OO+r,2)}, {v(OO+r,2)}, {v(Zr,2)} op_sel_hi:[1,0]")
    for i in range(8): A(f"v_cvt_pk_bf16_f32 v{SX+i}, v{OO+2*i}, v{OO+2*i+1}")
    A(f"""ds_write_b128 v{vOW}, {v(SX,4)}
    ds_write_b128 v{vOW}, {v(SX+4,4)} offset:1024""")
    flush_fh2(2)
    A("s_waitcnt lgkmcnt(0)\n s_barrier")
    ta(3)
    OF = KMF
    for tt in range(2):
        for kk in range(4): A(f"ds_read_b128 {v(OF+(tt*4+kk)*4,4)}, v{vOR} offset:{L_OO+kk*2048+tt*256}")
    ACC = [[QF + (tt*9 + t)*4 for t in range(9)] for tt in range(2)]
    sTag = sFA
    A(f"s_bfe_u32 s{sTag}, s{sN}, 0x10001")
    strow = lambda tt, r: st_row(ACC, tt, r, SX + 8*(r & 1), vSa, vSb, sPA, sT, sTag)
    sidel = []
    for tt in range(2):
        n = 0
        for kk in range(4):
            A(f"s_waitcnt lgkmcnt({7-(tt*4+kk)})")
            for t in range(9):
                d = v(ACC[tt][t], 4)
                A(f"v_mfma_f32_16x16x32_bf16 {d}, {v(OF+(tt*4+kk)*4,4)}, {a(WF(t,kk),4)}, {'0' if kk == 0 else d}")
                n += 1
                if tt == 1 and n > 3 and sidel:
                    A(sidel.pop(0))
                    if sidel and n % 3 == 0: A(sidel.pop(0))
        if tt == 0: sidel = sum([strow(0, r) for r in range(4)], [])
    assert not sidel
    ta(4)
    A.nop(4)
    for r in range(4):
        for x in strow(1, r): A(x)
    ta(5)
    A("s_waitcnt vmcnt(16)")
    flush_fh2(16)
    A(f"s_cmp_eq_u32 s{sN}, 31\n s_cbranch_scc1 L_A_NOPRE\n s_barrier")
    prework(); A.nop(10); prework2()
    A.label('L_A_NOPRE')
    ta(6); ta(7)
    A(f"s_add_u32 s{sNeed}, s{sN}, 1")
    reduce_row(A, OO, SEL, SMm, vRa, vRb, sPR, sT, vWa, vWb, L_R, L_E, sTag, sC, 0x34, mid=prework3)
    exfetch(64*4096)
    ta(8)
    A(f"""s_and_b32 s{sT}, s{sN}, 3
    s_cmp_lg_u32 s{sT}, s{sW}
    s_cbranch_scc1 L_A_NOLN""")
    Y = KMF; E_ = SMm; X9 = OO; TL = KMF+12
    unpack9(A, X9, XR)
    read_sums(A, Y, E_, vLa, vLb, L_R, L_E)
    flush_fh2()
    rnd9(A, Y, TL)
    op9(A, 'mul', Y, GA)
    rnd9(A, Y, TL)
    op9(A, 'add', Y, X9)
    A(f"s_add_u32 s{sT}, s{sRow}, {X1}")
    store9(A, Y, TM+24, vGa, vGb, WS, f"s{sT}")
    unpack9(A, Y, TM+24)
    ln9(A, Y, TL)
    op9(A, 'mul', Y, CB)
    rnd9(A, Y, TL)
    op9(A, 'add', Y, SBv)
    A(f"s_add_u32 s{sT}, s{sRow}, {H2}")
    store9(A, Y, TM+32, vGa, vGb, WS, f"s{sT}")
    A(f"s_mov_b32 s{sPend}, s{sNeed}")
    A.label('L_A_NOLN')
    ta(9)
    A(f"""s_bitcmp1_b32 s{sN}, 0
    s_mov_b32 s{sT}, 0x120000
    s_cselect_b32 s{sT}, {(-0x120000) & 0xffffffff}, s{sT}
    s_add_u32 s{sPA}, s{sPA}, s{sT}
    s_add_u32 s{sPR}, s{sPR}, s{sT}
    s_add_u32 s{sEX}, s{sEX}, {64*4096}
    s_add_u32 s{sRow}, s{sRow}, {64*1152}
    s_add_u32 s{sN}, s{sN}, 1
    s_cmp_lt_u32 s{sN}, 32
    s_cbranch_scc1 L_A_LOOP""")
    flush_fh2()
    stamp(A, 3, TM)
    A("s_endpgm")
```

```python
from common import *
import common

def rotl3(x): return ((x << 1) & 7) | (x >> 2)
def rotr3(x): return (x >> 1) | ((x & 1) << 2)

def gen_P(A):
    A.label('L_ROLE_P')
    W = WRegs(80)
    mk_srd(A, SR0, PWQ, 576*8192); mk_srd(A, SR1, PWK, 576*8192); mk_srd(A, SR2, PWV, 576*8192)
    sLds, sT, sSrc, sN, sOut, sH, sFl, sC = 70, 71, 72, 73, 74, 75, 76, 77
    vDma, vTrQK, vTrV, vL16, vSt, vZ, vT0, vT1, vT2 = 1, 2, 3, 4, 5, 6, 7, 8, 9
    A(f"""v_mov_b32 v{vZ}, 0
    s_lshl_b32 s{sFl}, s{sCU}, 1
    s_add_u32 s{sFl}, s{sFl}, s{sSUB}
    s_lshl_b32 s{sFl}, s{sFl}, 6
    s_add_u32 s{sFl}, s{sFl}, {FP}
    v_lshlrev_b32 v{vL16}, 4, v0
    s_mov_b64 exec, 15
    buffer_store_dword v{vZ}, v{vL16}, {WS}, s{sFl} offen sc1
    s_mov_b64 exec, -1
    s_lshl_b32 s{sT}, s{sW}, 4
    s_add_u32 s{sFl}, s{sFl}, s{sT}""")
    vTrQK2, vTrV2 = 11, 12
    A(f"""v_lshrrev_b32 v{vT0}, 4, v0
    v_lshlrev_b32 v{vDma}, 13, v{vT0}
    v_and_b32 v{vT0}, 15, v0
    v_lshl_add_u32 v{vDma}, v{vT0}, 4, v{vDma}
    s_lshl_b32 s{sLds}, s{sW}, 12
    s_lshl_b32 s{sSrc}, s{sCU}, 8
    s_lshl_b32 s{sT}, s{sW}, 17
    s_add_u32 s{sSrc}, s{sSrc}, s{sT}
    v_lshrrev_b32 v{vT0}, 5, v0
    v_lshlrev_b32 v{vT0}, 3, v{vT0}
    v_bfe_u32 v{vT1}, v0, 2, 2
    v_add_u32 v{vT0}, v{vT0}, v{vT1}
    v_lshlrev_b32 v{vT0}, 8, v{vT0}
    s_lshl_b32 s{sT}, s{sW}, 6
    v_add_u32 v{vT0}, s{sT}, v{vT0}
    v_bfe_u32 v{vT1}, v0, 4, 1
    v_lshl_add_u32 v{vT0}, v{vT1}, 5, v{vT0}
    v_and_b32 v{vT1}, 3, v0
    v_lshl_add_u32 v{vTrV}, v{vT1}, 3, v{vT0}
    v_and_b32 v{vT1}, 1, v0
    v_lshl_add_u32 v{vT0}, v{vT1}, 4, v{vT0}
    v_bfe_u32 v{vT1}, v0, 1, 1
    v_lshl_add_u32 v{vTrQK}, v{vT1}, 3, v{vT0}""")
    rounds = []
    for m_, (srd, vtr) in enumerate([(SR1, vTrQK), (SR2, vTrV), (SR0, vTrQK)]):
        for r in range(9):
            def rd(so, m_=m_, r=r, vtr=vtr):
                A(f"v_add_u32 v{vT2}, {so}, v{vtr}")
                for ga in range(4):
                    base = (m_*36 + 4*r + ga)*4
                    for j in range(2): A(f"ds_read_b64_tr_b16 {W(base+2*j, 2)}, v{vT2} offset:{ga*4096 + j*1024}")
            rounds.append(dict(dma=[(srd, vDma, sSrc, (64*r + 4*q)*8192, q*1024) for q in range(4)], reads=rd))
    load_coop(A, rounds, 9, 16384, sLds, sT, hooks={3: lambda: arrive_init(A, vT0, vZ), 22: lambda: code_touch(A, 'L_P_LOADED', 'L_P_END', 13, 14, 1)})
    A.label('L_P_LOADED')
    stamp(A, 1, vT0)
    wait_counter(A, D_H1, 64, vT0, vZ, sC, 0x12)
    A("s_barrier")
    stamp(A, 2, vT0)
    A(f"""v_and_b32 v{vT0}, 31, v0
    v_lshlrev_b32 v{vSt}, 4, v{vT0}
    v_lshrrev_b32 v{vT0}, 5, v0
    v_lshl_add_u32 v{vSt}, v{vT0}, 10, v{vSt}
    s_mul_i32 s{sH}, s{sSUB}, 36864
    s_mul_i32 s{sT}, s{sW}, 9216
    s_add_u32 s{sH}, s{sH}, s{sT}
    s_add_u32 s{sH}, s{sH}, {H1}
    s_mov_b32 s{sLds}, s{sT}
    s_lshl_b32 s{sOut}, s{sSUB}, 5
    s_add_u32 s{sOut}, s{sOut}, s{sCU}
    s_lshl_b32 s{sOut}, s{sOut}, 13
    s_lshl_b32 s{sT}, s{sW}, 11
    s_add_u32 s{sOut}, s{sOut}, s{sT}
    s_mov_b32 s{sN}, s{sSUB}
    s_cmp_eq_u32 s{sSUB}, 0
    s_cselect_b32 s79, {common.PSW}, 64""")
    vRd = 10
    def dma_h(buf_toggle):
        for i in range(9):
            A(f"s_add_u32 m0, s{sLds}, {i*1024}")
            A(f"s_add_u32 s{sT}, s{sH}, {i*1024}")
            A(f"buffer_load_dwordx4 v{vL16}, {WS}, s{sT} offen sc1 lds")
    dma_h(0)
    A(f"v_mov_b32 v{vRd}, v{vL16}")
    A(f"s_waitcnt vmcnt(0)")
    ACC = {0: 32, 1: 48, 2: 64}
    BF = [16, 20, 24, 28]
    A.label('L_P_LOOP')
    A("s_waitcnt vmcnt(6)")
    A("s_barrier")
    A(f"""s_xor_b32 s{sLds}, s{sLds}, 0x10000
    s_cmp_lt_u32 s{sN}, {common.PSW - 1}
    s_cselect_b32 s78, 2, 1
    s_mul_i32 s{sT}, s78, 36864
    s_add_u32 s{sH}, s{sH}, s{sT}""")
    for i in range(3):
        A(f"ds_read_b128 {v(BF[i],4)}, v{vRd} offset:{i*1024}")
    for ks in range(36):
        if ks + 3 < 36:
            A(f"ds_read_b128 {v(BF[(ks+3)%4],4)}, v{vRd} offset:{(ks+3)*1024}")
        rem = min(3, 35 - ks)
        A(f"s_waitcnt lgkmcnt({rem})")
        b = v(BF[ks % 4], 4)
        for m_ in range(3):
            w = W((m_*36 + ks)*4, 4)
            d = v(ACC[m_], 16)
            c = '0' if ks == 0 else d
            if m_ == 1: A(f"v_mfma_f32_32x32x16_bf16 {d}, {b}, {w}, {c}")
            else:       A(f"v_mfma_f32_32x32x16_bf16 {d}, {w}, {b}, {c}")
        if 12 <= ks < 30 and ks % 2 == 0:
            i = (ks - 12) // 2
            A(f"s_add_u32 m0, s{sLds}, {i*1024}")
            A(f"s_add_u32 s{sT}, s{sH}, {i*1024}")
            A(f"buffer_load_dwordx4 v{vL16}, {WS}, s{sT} offen sc1 lds")
        if ks == 11:
            A(f"""s_waitcnt vmcnt(0)
            v_mov_b32 v{vT0}, s{sN}
            buffer_store_dword v{vT0}, v{vZ}, {WS}, s{sFl} offen sc1""")
    A(f"v_xor_b32 v{vRd}, 0x10000, v{vRd}")
    A.nop(9)
    def pack_qk(acc, tmp):
        for x in range(8):
            A(f"v_cvt_pk_bf16_f32 v{tmp+rotl3(x)}, v{acc+x}, v{acc+8+x}")
    pack_qk(ACC[0], 16)
    A(f"s_add_u32 s{sT}, s{sOut}, {KB}")
    A(f"buffer_store_dwordx4 {v(16,4)}, v{vSt}, {WS}, s{sT} offen sc1")
    A(f"buffer_store_dwordx4 {v(20,4)}, v{vSt}, {WS}, s{sT} offen offset:512 sc1")
    for y in range(8):
        A(f"v_cvt_pk_bf16_f32 v{24+y}, v{ACC[1]+2*y}, v{ACC[1]+2*y+1}")
    A(f"s_add_u32 s{sT}, s{sOut}, {VB}")
    A(f"buffer_store_dwordx4 {v(24,4)}, v{vL16}, {WS}, s{sT} offen sc1")
    A(f"buffer_store_dwordx4 {v(28,4)}, v{vL16}, {WS}, s{sT} offen offset:1024 sc1")
    pack_qk(ACC[2], ACC[0])
    A(f"s_add_u32 s{sT}, s{sOut}, {QB}")
    A(f"buffer_store_dwordx4 {v(ACC[0],4)}, v{vSt}, {WS}, s{sT} offen sc1")
    A(f"buffer_store_dwordx4 {v(ACC[0]+4,4)}, v{vSt}, {WS}, s{sT} offen offset:512 sc1")
    A(f"""s_lshl_b32 s{sT}, s78, 18
    s_add_u32 s{sOut}, s{sOut}, s{sT}
    s_add_u32 s{sN}, s{sN}, s78
    s_cmp_lt_u32 s{sN}, s79
    s_cbranch_scc1 L_P_LOOP
    s_waitcnt vmcnt(0)
    v_mov_b32 v{vT0}, 64
    buffer_store_dword v{vT0}, v{vZ}, {WS}, s{sFl} offen sc1""")
    stamp(A, 3, vT0)
    A("s_endpgm")
    A.label('L_P_END')

def arrive_init(A, vt, vz, n=1, cond=None):
    l = A.newlab('AI')
    A(f"""{cond or f's_cmp_lg_u32 s{sW}, 0'}
    s_cbranch_scc1 {l}
    v_mov_b32 v{vt}, {n}
    s_mov_b64 exec, 1
    buffer_atomic_add v{vt}, v{vz}, {DBG}, 0 offen offset:{D_INIT}
    s_mov_b64 exec, -1""")
    A.label(l)
```

```python
from asmlib import *
KNAME = 'adaLN_cond__memory_aug_recurrent_mem_tr__swiglu_ffn__prompt'
FLG = 0x0000000
MOD = 0x0010000
M2  = 0x0020000
P1  = 0x1E00000
STAMP = 0x00E0000
H1  = 0x0100000
H2  = 0x0400000
X1  = 0x0700000
PA  = 0x0A00000
PF  = 0x0F00000
KM  = 0x1600000
VM  = 0x1A00000
QB  = 0x2000000
KB  = 0x3000000
VB  = 0x4000000
WS_SIZE = 0x10000000
FP  = FLG + 0x0000
FT  = FLG + 0x2000
FA  = FLG + 0x3000
FH2 = FLG + 0x3200
FF  = FLG + 0x3400
D_INIT = 51*4
D_MOD  = 18*4
D_H1   = 1*4
D_ERR  = 56*4
N_INIT = 224 + 72
PX, PMEM0, PWQ, PWK, PWV, PWO, PSL, PBX, PG, PU, PD, PC, PWM, POUT, PDBG, PWS = [4+2*i for i in range(16)]
SRD_WS = 36; SRD_DBG = 40
SR0, SR1, SR2, SR3, SR4 = 44, 48, 52, 56, 60
sW, sCU, sXCC, sSUB, sERR = 64, 65, 66, 67, 68
WS = s(SRD_WS, 4); DBG = s(SRD_DBG, 4)
SPIN = 1 << 15

def mk_srd(A, dst, ptr, size):
    A(f"""s_mov_b32 s{dst}, s{ptr}
    s_and_b32 s{dst+1}, s{ptr+1}, 0xffff
    s_mov_b32 s{dst+2}, {size}
    s_mov_b32 s{dst+3}, 0x20000""")

def wait_counter(A, off, target, vt, vz, sc, err, srd=DBG, cmp='ge', sleep=2):
    l0 = A.newlab('WC'); l1 = A.newlab('WCD')
    A(f"s_mov_b32 s{sc}, {SPIN}")
    A.label(l0)
    A(f"""buffer_load_dword v{vt}, v{vz}, {srd}, 0 offen offset:{off} sc1
    s_waitcnt vmcnt(0)
    v_cmp_gt_u32 vcc, {target}, v{vt}
    s_cbranch_vccz {l1}
    s_sleep {sleep}
    s_sub_u32 s{sc}, s{sc}, 1
    s_cmp_lg_u32 s{sc}, 0
    s_cbranch_scc1 {l0}
    s_mov_b32 s{sERR}, {err}
    s_branch L_ABORT""")
    A.label(l1)

def rnd2(A, lo, hi, a0, a1, t):
    A(f"""v_cvt_pk_bf16_f32 v{t}, v{a0}, v{a1}
    v_lshlrev_b32 v{lo}, 16, v{t}
    v_and_b32 v{hi}, 0xffff0000, v{t}""")
def rnd1(A, d, a0):
    A(f"""v_cvt_pk_bf16_f32 v{d}, v{a0}, v{a0}
    v_lshlrev_b32 v{d}, 16, v{d}""")

def load_frags(A, jobs, nslots, slot_bytes, sLds, sT, sc='', hooks={}):
    N = len(jobs)
    issued = []
    cnt = [0]
    def issue(i):
        j = jobs[i]
        sl = j.get('slot', i % nslots)
        for (srd, voff, sbase, const, ldsoff) in j['dma']:
            A(f"s_add_u32 m0, s{sLds}, {sl*slot_bytes+ldsoff}")
            A(f"s_add_u32 s{sT}, s{sbase}, {const}")
            A(f"buffer_load_dwordx4 v{voff}, {s(srd,4)}, s{sT} offen {sc} lds")
            cnt[0] += 1
        issued.append(cnt[0])
    for i in range(min(nslots, N)): issue(i)
    for i in range(N):
        j = jobs[i]
        sl = j.get('slot', i % nslots)
        out = cnt[0] - issued[i]
        assert out <= 63
        A(f"s_waitcnt vmcnt({out})")
        if i in hooks: hooks[i]()
        for (dst, vaddr, imm) in j['reads']:
            off = sl*slot_bytes + imm
            assert off < 65536
            A(f"ds_read_b64_tr_b16 {dst}, v{vaddr} offset:{off}")
        if j.get('post'):
            A("s_waitcnt lgkmcnt(0)")
            for ln in j['post']: A(ln(sl*slot_bytes) if callable(ln) else ln)
        if i + nslots < N:
            A("s_waitcnt lgkmcnt(0)")
            issue(i + nslots)
    A("s_waitcnt lgkmcnt(0)")

class WRegs:
    def __init__(self, vbase, abase=0):
        self.vbase = vbase; self.abase = abase
    def __call__(self, i, c):
        na = 256 - self.abase
        if i + c <= na: return a(self.abase + i, c)
        assert i >= na, (i, c)
        r = self.vbase + (i - na)
        assert r + c <= 256, (i, c)
        return v(r, c)

DEV = True
HELP = 0
HELP0 = 9
ILV = False
T8C = -1
LOOK = 0
LDEP = 3
SB1 = ''
SB2 = ''
LB = 'sc1'
FSL = 7
TD = 2
VXE = True
LATEHK = (1,)
DUP2 = 0
T8LAST = False
PSW = 64
FACK = 0
EARLYF = 60
ALIGN = True
OWNB = 4
ACK = (7,0)
TCH = (2,2)
CWARM = True
SER = False
PSLEEP = 4
XMAP = [0,3,1,5,2,6,4,7]
PST = False
TLOAD = False
FOFF = False
WARM = ''
FDELAY = 1
WST = [0,1,2,2]
FINE = None
NOX = False
DB0 = [0,0,0,0]
NOEX = False
DEX = 0
B1B = 12
AOFF = False
NP2 = 1
G2 = 16
NP1 = 1
G1 = 2
E1 = None
D2R = 0
EXPOS = 'S'
FLPOS = 'S'
RSTPOS = 'S'
TSR = False
P2B = -1
C2B = 8
D1 = [0,0,0]
D2N = 4
XONLY = False
PFSH = 3
H1DELAY = [0,0,0]
B0 = 1
TS = True
STAMP2 = 0x00D0000
def stamp(A, idx, vt=None):
    if not DEV: return
    A(f"""s_memrealtime s[98:99]
    s_memtime s[100:101]
    s_lshl_b32 s96, s{sXCC}, 5
    s_add_u32 s96, s96, s{sCU}
    s_lshl_b32 s96, s96, 2
    s_add_u32 s96, s96, s{sW}
    s_lshl_b32 s96, s96, 7
    s_add_u32 s96, s96, {STAMP + idx*4}
    s_waitcnt lgkmcnt(0)
    v_mov_b32 v{vt}, s98
    v_mov_b32 v{vt+1}, 0
    buffer_store_dword v{vt}, v{vt+1}, {WS}, s96 offen
    s_nop 1
    v_mov_b32 v{vt}, s100
    buffer_store_dword v{vt}, v{vt+1}, {WS}, s96 offen offset:64""")

class Cnt:
    def __init__(self, A, name, mx):
        self.A = A; self.name = name; self.mx = mx
        self.q = []
    def op(self, txt, tag=None):
        self.A(txt); self.q.append(tag)
    def need(self, *tags):
        idx = -1
        for i, t in enumerate(self.q):
            if t in tags: idx = i
        if idx < 0: return
        n = len(self.q) - 1 - idx
        n = min(n, self.mx)
        self.A(f"s_waitcnt {self.name}({n})")
        self.q = self.q[len(self.q) - n:] if n else []
    def drain(self):
        if self.q:
            self.A(f"s_waitcnt {self.name}(0)")
        self.q = []
    def reset(self): self.q = []

def load_coop(A, rounds, nslots, slot_bytes, sLds, sT, hooks={}, depth=None, look=0, vT=None, vD=None, help_=None):
    N = len(rounds); issued = []; cnt = [0]
    depth = depth or nslots
    def issue(i):
        sl = i % nslots
        for (srd, voff, sbase, const, ldsoff) in rounds[i]['dma']:
            A(f"s_add_u32 m0, s{sLds}, {sl*slot_bytes+ldsoff}")
            A(f"s_add_u32 s{sT}, s{sbase}, {const}")
            A(f"buffer_load_dwordx4 v{voff}, {s(srd,4)}, s{sT} offen lds")
            cnt[0] += 1
        issued.append(cnt[0])
        if help_ and i >= HELP0 and rounds[i].get('touch'):
            sId, sBase = help_
            srd, _, const = rounds[i]['touch']
            for part in range(HELP):
                l = A.newlab('HL')
                A(f"s_cmp_lg_u32 s{sId}, {(HELP*i + part) % 12}\n s_cbranch_scc1 {l}")
                A(f"s_add_u32 s{sT}, s{sBase}, {const + part*rounds[i].get('half', 32)*8192}")
                A(f"buffer_load_dword v{vD}, v{vT}, {s(srd,4)}, s{sT} offen")
                A.label(l)
    def touch(i):
        if look and i < N and rounds[i].get('touch'):
            srd, sbase, const = rounds[i]['touch']
            A(f"s_add_u32 s{sT}, s{sbase}, {const}")
            A(f"buffer_load_dword v{vD}, v{vT}, {s(srd,4)}, s{sT} offen")
            cnt[0] += 1
    for i in range(look): touch(i)
    nxt = 0
    def dep(i):
        return depth if (look and rounds[i].get('touch')) else nslots
    def fill(cur):
        nonlocal nxt
        while nxt < N and nxt - cur < dep(nxt): issue(nxt); nxt += 1
    fill(0)
    for i in range(N):
        out = cnt[0] - issued[i]; assert out <= 63
        A(f"s_waitcnt vmcnt({out}) lgkmcnt(0)\n s_barrier")
        if i in hooks: hooks[i]()
        touch(i + look)
        fill(i)
        if i >= 1 and rounds[i-1].get('post'): rounds[i-1]['post'](((i-1) % nslots)*slot_bytes)
        so = (i % nslots)*slot_bytes
        r = rounds[i]['reads']
        if callable(r): r(so)
        else:
            for (dst, vaddr, imm) in r:
                assert so + imm < 65536
                A(f"ds_read_b64_tr_b16 {dst}, v{vaddr} offset:{so+imm}")
    A("s_waitcnt lgkmcnt(0)\n s_barrier")
    if rounds[N-1].get('post'): rounds[N-1]['post'](((N-1) % nslots)*slot_bytes)

def code_touch(A, l0, l1, vt, vd, nld, srd=SR4, lane=0, stride_waves=True):
    if not CWARM: return
    lp = A.newlab('PC')
    A(f"s_getpc_b64 s[{srd}:{srd+1}]")
    A.label(lp)
    A(f"""s_add_u32 s{srd}, s{srd}, {l0}-{lp}
    s_addc_u32 s{srd+1}, s{srd+1}, 0
    s_and_b32 s{srd+1}, s{srd+1}, 0xffff
    s_mov_b32 s{srd+2}, {l1}-{l0}
    s_mov_b32 s{srd+3}, 0x20000
    v_lshlrev_b32 v{vt}, 7, v{lane}
    s_mul_i32 s97, s{sW}, {8192*nld}""")
    for i in range(nld):
        A(f"buffer_load_dword v{vd}, v{vt}, {s(srd,4)}, s97 offen")
        if i < nld - 1: A("s_add_u32 s97, s97, 8192")
```

```python
from common import *
import common
from role_p import arrive_init
from role_a import *

def gen_F(A):
    A.label('L_ROLE_F')
    def ta(i):
        if common.DEV and common.TS:
            l = A.newlab('TA')
            A(f"s_cmp_lg_u32 s{sN}, 12\n s_cbranch_scc1 {l}")
            stamp(A, 4+i, 132)
            A.label(l)
    sT, sC, sS, sLds, sGU, sWd, sMx, sPF, sPR, sFF, sRow, sNeed, sT2, sN, sH = range(70, 85)
    lane, t0, t1, vZ = 0, 1, 2, 3
    W = WRegs(134)
    L_H = 0; L_ACT = 36864; L_A16 = L_ACT + 8192; L_R = L_ACT; L_E = L_ACT + 2048; L_WD = 46080; L_MIX = 119808
    mk_srd(A, SR0, PG, 576*9216); mk_srd(A, SR1, PU, 576*9216); mk_srd(A, SR2, PD, 4608*1152); mk_srd(A, SR3, POUT, 2048*1152)
    A(f"""v_mov_b32 v{vZ}, 0
    v_lshlrev_b32 v4, 4, v0
    s_mul_i32 s{sT}, s{sSUB}, 0x240000
    s_mul_i32 s{sPR}, s{sCU}, 36864
    s_add_u32 s{sPR}, s{sPR}, s{sT}
    s_add_u32 s{sPR}, s{sPR}, {PF}""")
    if common.WARM:
        A(f"""s_lshl_b32 s{sT2}, s{sSUB}, 5
        s_add_u32 s{sT2}, s{sT2}, s{sCU}
        s_lshl_b32 s{sT2}, s{sT2}, 2
        s_add_u32 s{sT2}, s{sT2}, s{sW}""")
        for ptr, size in [dict(m=(PWM, 3981312), x=(PX, 2359296), k=(PWK, 4718592), q=(PWQ, 4718592), v=(PWV, 4718592), o=(PWO, 4718592), g=(PG, 5308416), u=(PU, 5308416), d=(PD, 5308416))[c_] for c_ in common.WARM]:
            mk_srd(A, SR4, ptr, size)
            per = size // 384
            A(f"s_mul_i32 s{sT}, s{sT2}, {per}\n v_lshlrev_b32 v7, 7, v0")
            for i in range((per + 8191)//8192):
                if (i+1)*8192 > per: A(f"v_cmp_gt_u32 vcc, {per - i*8192}, v7\n s_nop 0\n s_mov_b64 exec, vcc")
                A(f"buffer_load_dword v16, v7, {s(SR4,4)}, s{sT} offen")
                A(f"s_mov_b64 exec, -1\n s_add_u32 s{sT}, s{sT}, 8192")
    if common.FOFF == 1: A("s_endpgm")
    init_rows(A, 4, 8, sPR, sT)
    if common.FDELAY == 1: wait_counter(A, D_MOD, 54, t0, vZ, sC, 0x42, sleep=16)
    if common.FDELAY == 2: wait_counter(A, D_H1, 64, t0, vZ, sC, 0x42, sleep=16)
    A("s_waitcnt vmcnt(0)\n s_barrier")
    arrive_init(A, t0, vZ)
    bits = mkbits(A, lane, t0)
    vL16, vL4, vFH, vFF, vWL, vMR, vAW0, vAW1, vA16W, vOR, vA16R = range(4, 15)
    vB = [15, 16, 17, 18]
    vSa, vSb, vRa, vRb, vWa, vWb, vLa, vLb, vGa, vGb = range(19, 29)
    vDH = 29
    GB = 38
    XR = 47
    XR = 48
    SEL = 56
    WK2 = 60
    WK = 60
    vDg, vDd, vD8, vDx, vTg, vTd, vT16, vTm, vMW = range(30, 39)
    bits(t1, [(2, 4, 0)])
    A(f"v_mul_u32_u24 v{vDg}, 9216, v{t1}\n v_mul_u32_u24 v{vDd}, 1152, v{t1}\n v_mov_b32 v{vD8}, v{vDd}")
    bits(vDg, [(0, 2, 4)], acc=True); bits(vDd, [(0, 2, 4)], acc=True); bits(vD8, [(0, 1, 4)], acc=True)
    A(f"""v_bfe_u32 v{t0}, v{lane}, 1, 1
    v_mul_u32_u24 v{t0}, {32*1152}, v{t0}
    v_add_u32 v{vD8}, v{vD8}, v{t0}""")
    bits(t1, [(1, 5, 0)])
    A(f"v_mul_u32_u24 v{vDx}, 9216, v{t1}")
    bits(vDx, [(0, 1, 4)], acc=True)
    A(f"""s_mul_i32 s{sGU}, s{sCU}, 288
    s_mul_i32 s{sT}, s{sW}, {32*9216}
    s_add_u32 s{sMx}, s{sGU}, s{sT}
    s_add_u32 s{sMx}, s{sMx}, 256
    s_lshl_b32 s{sT}, s{sW}, 6
    s_add_u32 s{sGU}, s{sGU}, s{sT}
    s_mul_i32 s{sWd}, s{sCU}, {144*1152}
    s_mul_i32 s{sT}, s{sW}, 288
    s_add_u32 s{sWd}, s{sWd}, s{sT}
    s_lshl_b32 s{sLds}, s{sW}, 11
    s_add_u32 s{sLds}, s{sLds}, {L_MIX}
    v_lshlrev_b32 v{vL16}, 4, v{lane}
    v_lshlrev_b32 v{vL4}, 2, v{lane}
    v_add_u32 v{vMW}, s{sLds}, v{vL16}""")
    bits(vTm, [(0, 1, 10), (4, 2, 8), (2, 2, 5), (1, 1, 3)])
    A(f"v_add_u32 v{vTm}, s{sLds}, v{vTm}")
    jobs = []
    for i in range(5):
        post = [(lambda sb, q=q: f"ds_write_b128 v{vMW}, {v(WK+4*q,4)} offset:{sb+q*1024}") for q in range(2)] + ["s_waitcnt lgkmcnt(0)"]
        jobs.append(dict(dma=[(SR0, vDx, sMx, i*128*9216, 0), (SR1, vDx, sMx, i*128*9216, 1024)],
                         reads=[(v(WK+4*mt+2*yy, 2), vTm, yy*128 + mt*16) for mt in range(2) for yy in range(2)], post=post))
    load_frags(A, jobs, 5, 8192, sLds, sT)
    A(f"""s_mul_i32 s{sT}, s{sW}, 18432
    s_add_u32 s{sT}, s{sT}, {L_WD}
    v_add_u32 v{vWL}, s{sT}, v{vL16}
    s_lshl_b32 s{sLds}, s{sW}, 12
    s_mul_i32 s{sGU}, s{sCU}, 288
    s_mul_i32 s{sT}, s{sW}, {16*9216}
    s_add_u32 s{sGU}, s{sGU}, s{sT}
    s_mul_i32 s{sWd}, s{sCU}, {144*1152}
    s_lshl_b32 s{sMx}, s{sW}, 8
    s_add_u32 s{sMx}, s{sMx}, s{sWd}
    s_mul_i32 s{sT}, s{sW}, {16*1152}
    s_add_u32 s{sWd}, s{sWd}, s{sT}""")
    bits(t1, [(4, 2, 0)])
    A(f"v_mul_u32_u24 v{vDg}, 9216, v{t1}\n v_mul_u32_u24 v{vDd}, 1152, v{t1}")
    bits(vDg, [(0, 4, 4)], acc=True); bits(vDd, [(0, 4, 4)], acc=True)
    bits(vTg, [(4, 2, 11), (2, 2, 8), (0, 2, 3)])
    bits(vTd, [(4, 2, 10), (2, 2, 8), (0, 2, 3)])
    bits(vT16, [(4, 1, 8), (5, 1, 10), (2, 1, 9), (3, 1, 11), (0, 2, 3)])
    vTd8, vT168 = vD8, vDx
    A(f"""s_lshl_b32 s{sT}, s{sW}, 5
    v_add_u32 v{vTd8}, s{sT}, v{vTd}
    v_add_u32 v{vT168}, s{sT}, v{vT16}
    v_add_u32 v{vTd}, s{sT}, v{vTd8}
    v_add_u32 v{vT16}, s{sT}, v{vT168}
    s_lshl_b32 s{sT}, s{sW}, 6
    v_add_u32 v{vTg}, s{sT}, v{vTg}""")
    GU = lambda m, gi, ks: ((m*2 + gi)*18 + ks)*4
    DN = lambda t, kk: 288 + (kk*9 + t)*4
    D16 = lambda t: 360 + 2*t
    rounds = []
    def mk(dma, va, lst):
        def rd(so):
            A(f"v_add_u32 v{t1}, {so}, v{va}")
            for (d, imm) in lst: A(f"ds_read_b64_tr_b16 {d}, v{t1} offset:{imm}")
        rounds.append(dict(dma=dma, reads=rd))
    ldsW = {}
    PK = lambda t, kk: ((kk-2)*9 + t)*4
    for y in range(5):
        nu = 2 if y < 4 else 1
        mk([(SR2, vDd, sWd, (64 + 4*q)*1152 + y*256, q*1024) for q in range(4)], vTd if y < 4 else vTd8,
           [(v(WK2 + PK(2*y+u, 2+h) + 2*yy, 2), h*8192 + yy*4096 + u*32) for h in range(2) for u in range(nu) for yy in range(2)])
    for r in range(9):
        for m, srd in enumerate((SR0, SR1)):
            mk([(srd, vDg, sGU, (64*r + 4*q)*9216, q*1024) for q in range(4)], vTg,
               [(W(GU(m, gi, 2*r+h) + 2*yy, 2), h*8192 + yy*1024 + gi*32) for h in range(2) for gi in range(2) for yy in range(2)])
    mk([(SR2, vDd, sMx, (128 + 4*q)*1152, q*1024) for q in range(4)], vT16,
       [(W(D16(2*y+u), 2), y*4096 + u*32) for y in range(4) for u in range(2)])
    mk([(SR2, vDd, sMx, (128 + 4*q)*1152 + 1024, q*1024) for q in range(4)], vT168, [(W(D16(8), 2), 0)])
    for y in range(5):
        nu = 2 if y < 4 else 1
        mk([(SR2, vDd, sWd, (4*q)*1152 + y*256, q*1024) for q in range(4)], vTd if y < 4 else vTd8,
           [(W(DN(2*y+u, h) + 2*yy, 2), h*8192 + yy*4096 + u*32) for h in range(2) for u in range(nu) for yy in range(2)])
    load_coop(A, rounds, common.FSL, 16384, sLds, sT)
    for kk in (2, 3):
        for t_ in range(9):
            ldsW[(t_, kk)] = PK(t_, kk)*256
            A(f"ds_write_b128 v{vWL}, {v(WK2 + PK(t_, kk), 4)} offset:{ldsW[(t_, kk)]}")
            if t_ == 8: A("s_waitcnt lgkmcnt(0)")
    stamp(A, 1, WK)
    if common.FOFF == 2: A("s_endpgm")
    reduce_setup(A, bits, lane, t0, t1, SEL, vSa, vSb, vRa, vRb, vWa, vWb, vLa, vLb, vGa, vGb, L_R, L_E, sT)
    wait_counter(A, D_INIT, N_INIT, t0, vZ, sC, 0x41)
    wait_counter(A, D_MOD, 54, t0, vZ, sC, 0x42)
    A(f"s_mov_b32 s{sT}, {MOD+5*1152}")
    load9(A, GB, WK, vGa, vGb, WS, f"s{sT}", 0)
    A("s_waitcnt vmcnt(0)")
    unpack9(A, GB, WK)
    for i in range(9):
        A(f"""v_add_u32 v{t0}, {i*64}, v{lane}
        v_mul_u32_u24 v{t1}, 911, v{t0}
        v_lshrrev_b32 v{t1}, 17, v{t1}
        s_lshl_b32 s{sT}, s{sW}, 2
        v_add_u32 v{t1}, s{sT}, v{t1}
        v_and_b32 v{t1}, 7, v{t1}
        v_xor_b32 v{t0}, v{t0}, v{t1}
        v_lshlrev_b32 v{vDH+i}, 4, v{t0}""")
    bits(t1, [(0, 4, 0)])
    A(f"v_mul_u32_u24 v{vB[0]}, 1152, v{t1}")
    A(f"""v_bfe_u32 v{t0}, v{lane}, 1, 3
    v_bfe_u32 v{t1}, v{lane}, 4, 2
    v_xor_b32 v{t0}, v{t0}, v{t1}
    v_xor_b32 v{t1}, 4, v{t0}
    v_lshl_add_u32 v{vB[1]}, v{t1}, 4, v{vB[0]}
    v_lshl_add_u32 v{vB[0]}, v{t0}, 4, v{vB[0]}
    s_lshr_b32 s{sT}, s{sW}, 1
    s_xor_b32 s{sT2}, s{sT}, 1
    s_mul_i32 s{sC}, s{sT2}, 18432
    v_add_u32 v{vB[2]}, s{sC}, v{vB[0]}
    v_add_u32 v{vB[3]}, s{sC}, v{vB[1]}
    s_mul_i32 s{sC}, s{sT}, 18432
    v_add_u32 v{vB[0]}, s{sC}, v{vB[0]}
    v_add_u32 v{vB[1]}, s{sC}, v{vB[1]}""")
    bits(vOR, [(4, 2, 9), (0, 4, 4)])
    A(f"""s_lshl_b32 s{sC}, s{sW}, 11
    s_add_u32 s{sC}, s{sC}, {L_ACT}
    v_add_u32 v{vAW0}, s{sC}, v{vOR}
    s_lshl_b32 s{sC}, s{sT2}, 8
    v_add_u32 v{vAW1}, s{sC}, v{vAW0}
    s_lshl_b32 s{sC}, s{sT}, 8
    v_add_u32 v{vAW0}, s{sC}, v{vAW0}""")
    bits(vA16R, [(4, 2, 8), (0, 4, 3)])
    A(f"""s_lshl_b32 s{sC}, s{sT}, 7
    s_and_b32 s{sT2}, s{sW}, 1
    s_lshl_b32 s{sT}, s{sT2}, 2
    s_add_u32 s{sC}, s{sC}, s{sT}
    s_add_u32 s{sC}, s{sC}, {L_A16}
    v_add_u32 v{vA16W}, s{sC}, v{vA16R}
    s_lshl_b32 s{sC}, s{sT2}, 10
    s_add_u32 s{sC}, s{sC}, {L_MIX}
    v_add_u32 v{vMR}, s{sC}, v{vL16}
    s_mul_i32 s{sT}, s{sSUB}, 0x240000
    s_add_u32 s{sT}, s{sT}, {PF}
    s_mul_i32 s{sPF}, s{sCU}, 1152
    s_add_u32 s{sPF}, s{sPF}, s{sT}
    s_mul_i32 s{sPR}, s{sCU}, 36864
    s_add_u32 s{sPR}, s{sPR}, s{sT}
    s_mov_b32 s{sS}, s{sSUB}
    s_mul_i32 s{sLds}, s{sW}, 9216
    s_mov_b32 s{sN}, 0
    s_barrier""")
    stamp(A, 2, WK)
    sPre, sFl = 85, 86
    def seg_regs(delta):
        A(f"""s_add_u32 s{sT}, s{sS}, {delta}
        s_lshr_b32 s{sNeed}, s{sT}, 1
        s_add_u32 s{sNeed}, s{sNeed}, 1
        s_and_b32 s{sFl}, s{sT}, 1
        s_lshl_b32 s{sFl}, s{sFl}, 7
        s_add_u32 s{sFl}, s{sFl}, {FH2}
        s_mul_i32 s{sH}, s{sT}, 36864
        s_add_u32 s{sH}, s{sH}, s{sLds}
        s_add_u32 s{sH}, s{sH}, {H2}""")
    def dma_h():
        for i in range(9):
            A(f"s_add_u32 m0, s{sLds}, {i*1024}\n s_nop 0")
            A(f"buffer_load_dwordx4 v{vDH+i}, {WS}, s{sH} offen sc1 lds")
    seg_regs(0)
    A(f"s_mov_b32 s{sPre}, 0")
    A.label('L_F_LOOP')
    ta(0)
    A(f"""s_bfe_u32 s{sFF}, s{sN}, 0x10001
    s_mul_i32 s{sT}, s{sS}, 36864
    s_mul_i32 s{sRow}, s{sCU}, 1152
    s_add_u32 s{sRow}, s{sRow}, s{sT}
    s_cmp_lg_u32 s{sPre}, 0
    s_cbranch_scc1 L_F_HAVE""")
    poll_words(A, vFH, vL4, sFl, 0, sNeed, "lo32", sC, 0x43, False)
    ta(1)
    dma_h()
    A.label('L_F_HAVE')
    A("s_waitcnt vmcnt(0)\n s_barrier")
    ta(2)
    A(f"s_add_u32 s{sT}, s{sRow}, {X1}")
    load9(A, XR, XR, vGa, vGb, WS, f"s{sT}", 0)
    seg_regs(3)
    ACCG = lambda m, gi, sl: WK + ((m*2 + gi)*2 + sl)*4
    ACCM = WK + 32
    BF = WK + 36
    D = Cnt(A, 'lgkmcnt', 15)
    T = WK + 72
    def actpair(g, u, dst, T=T):
        o = []
        r2 = lambda x: [f"v_cvt_pk_bf16_f32 v{T}, v{x}, v{x+1}", f"v_lshlrev_b32 v{x}, 16, v{T}", f"v_and_b32 v{x+1}, 0xffff0000, v{T}"]
        o += r2(g) + r2(u)
        o += [f"v_mul_f32 v{T}, 0xbfb8aa3b, v{g}", f"v_mul_f32 v{T+1}, 0xbfb8aa3b, v{g+1}",
              f"v_exp_f32 v{T}, v{T}", f"v_exp_f32 v{T+1}, v{T+1}",
              f"v_add_f32 v{T}, 1.0, v{T}", f"v_add_f32 v{T+1}, 1.0, v{T+1}",
              f"v_rcp_f32 v{T}, v{T}", f"v_rcp_f32 v{T+1}, v{T+1}",
              f"v_mul_f32 v{g}, v{g}, v{T}", f"v_mul_f32 v{g+1}, v{g+1}, v{T+1}"]
        o += r2(g)
        o += [f"v_mul_f32 v{g}, v{g}, v{u}", f"v_mul_f32 v{g+1}, v{g+1}, v{u+1}", f"v_cvt_pk_bf16_f32 v{dst}, v{g}, v{g+1}"]
        return o
    for gi in range(2):
        def rd(ks):
            b = BF + (ks % 3)*12
            for sl in range(2): D.op(f"ds_read_b128 {v(b+4*sl,4)}, v{vB[sl*2+(ks&1)]} offset:{L_H+(ks>>1)*128}", (gi, ks))
            if gi == 0: D.op(f"ds_read_b128 {v(b+8,4)}, v{vMR} offset:{ks*2048}", (gi, ks))
        side = []
        if gi == 1:
            for sl in range(2):
                for hh in range(2): side += actpair(ACCG(0, 0, sl) + 2*hh, ACCG(1, 0, sl) + 2*hh, ACCG(0, 0, sl) + hh)
            side += [f"v_permlane16_swap_b32 v{ACCM}, v{ACCM+1}", f"v_permlane16_swap_b32 v{ACCM+2}, v{ACCM+3}",
                     f"v_mov_b32 v{T}, v{ACCM+1}", f"v_mov_b32 v{ACCM+1}, v{ACCM+2}", f"v_mov_b32 v{ACCM+2}, v{T}"]
            side += actpair(ACCM, ACCM+2, ACCM)
        if gi == 0: rd(0); rd(1)
        n = 0
        for ks in range(18):
            if ks + 2 < 18: rd(ks + 2)
            elif gi == 0:
                gi = 1; rd(ks + 2 - 18); gi = 0
            D.need((gi, ks))
            b = BF + (ks % 3)*12
            for m in range(2):
                for sl in range(2):
                    d = v(ACCG(m, gi, sl), 4)
                    A(f"v_mfma_f32_16x16x32_bf16 {d}, {W(GU(m,gi,ks),4)}, {v(b+4*sl,4)}, {'0' if ks == 0 else d}")
                    n += 1
                    if n > 4:
                        for _ in range(2):
                            if side: A(side.pop(0))
            if gi == 0:
                d = v(ACCM, 4)
                A(f"v_mfma_f32_16x16x32_bf16 {d}, {v(b+8,4)}, {v(b,4)}, {'0' if ks == 0 else d}")
            if gi == 1 and ks == 8:
                A(f"s_mov_b32 exec_hi, 0\n buffer_load_dword v{vFH}, v{vL4}, {WS}, s{sFl} offen sc1\n s_mov_b64 exec, -1")
        assert not side
    ta(3)
    A(f"ds_write_b32 v{vA16W}, v{ACCM}")
    A.nop(4)
    for sl in range(2):
        pa = actpair(ACCG(0, 1, sl), ACCG(1, 1, sl), ACCG(0, 0, sl) + 2, T)
        pb = actpair(ACCG(0, 1, sl) + 2, ACCG(1, 1, sl) + 2, ACCG(0, 0, sl) + 3, BF)
        for x, y in zip(pa, pb): A(x); A(y)
        A(f"ds_write_b128 v{vAW0 if sl == 0 else vAW1}, {v(ACCG(0, 0, sl),4)}")
    A(f"""s_waitcnt lgkmcnt(0) vmcnt(0)
    s_barrier
    s_mov_b32 s{sPre}, 0
    s_mov_b32 exec_hi, 0
    v_cmp_gt_u32 vcc, s{sNeed}, v{vFH}
    s_mov_b64 exec, -1
    s_cbranch_vccnz L_F_NOPRE
    s_mov_b32 s{sPre}, 1""")
    dma_h()
    A.label('L_F_NOPRE')
    ta(4)
    AF = WK + 36
    SG = WK + 56
    ACC = [[WK + 4*t for t in range(9)]]*2
    for tt in range(2):
        D.reset()
        for kk in range(4): D.op(f"ds_read_b128 {v(AF+4*kk,4)}, v{vOR} offset:{L_ACT+kk*2048+tt*256}", ('a', kk))
        D.op(f"ds_read_b64 {v(AF+16,2)}, v{vA16R} offset:{L_A16+tt*128}", ('a', 4))
        seq = [(t, kk) for kk in (2, 3) for t in range(9)]
        for i in range(4): D.op(f"ds_read_b128 {v(SG+4*i,4)}, v{vWL} offset:{ldsW[seq[i]]}", ('w', i))
        regseq = [(t, kk) for kk in (0, 1, 4) for t in range(9)]
        def rm(t, kk):
            d = v(ACC[tt][t], 4)
            D.need(('a', kk))
            if kk == 4: A(f"v_mfma_f32_16x16x16_bf16 {d}, {v(AF+16,2)}, {W(D16(t),2)}, {d}")
            else: A(f"v_mfma_f32_16x16x32_bf16 {d}, {v(AF+4*kk,4)}, {W(DN(t,kk),4)}, {'0' if kk == 0 else d}")
        for x in regseq[:9]: rm(*x)
        for i in range(18):
            t, kk = seq[i]
            d = v(ACC[tt][t], 4)
            D.need(('a', kk), ('w', i))
            A(f"v_mfma_f32_16x16x32_bf16 {d}, {v(AF+4*kk,4)}, {v(SG+4*(i%4),4)}, {d}")
            if i + 4 < 18: D.op(f"ds_read_b128 {v(SG+4*(i%4),4)}, v{vWL} offset:{ldsW[seq[i+4]]}", ('w', i+4))
            rm(*regseq[9 + (i + 4) % 18])
        A.nop(8)
        for r in range(4):
            for x in st_row(ACC, tt, r, SG + 8*(r & 1), vSa, vSb, sPF, sT, sFF): A(x)
    ta(5); ta(6)
    A(f"s_waitcnt vmcnt({common.FACK})")
    ta(7)
    reduce_row(A, WK, SEL, WK+36, vRa, vRb, sPR, sT, vWa, vWb, L_R, L_E, sFF, sC, 0x44, mid=lambda: A("s_barrier"))
    ta(8)
    A(f"""s_and_b32 s{sT}, s{sN}, 3
    s_cmp_lg_u32 s{sT}, s{sW}
    s_cbranch_scc1 L_F_NOLN""")
    Y = WK; E_ = WK+12; X9 = WK+24; TM = WK+40
    unpack9(A, X9, XR)
    read_sums(A, Y, E_, vLa, vLb, L_R, L_E)
    rnd9(A, Y, TM)
    op9(A, 'mul', Y, GB)
    rnd9(A, Y, TM)
    op9(A, 'add', Y, X9)
    store9(A, Y, TM+4, vGa, vGb, s(SR3,4), f"s{sRow}", sc='')
    A.label('L_F_NOLN')
    ta(9)
    A(f"""s_bitcmp1_b32 s{sN}, 0
    s_mov_b32 s{sT}, 0x120000
    s_cselect_b32 s{sT}, {(-0x120000) & 0xffffffff}, s{sT}
    s_add_u32 s{sPF}, s{sPF}, s{sT}
    s_add_u32 s{sPR}, s{sPR}, s{sT}
    s_add_u32 s{sN}, s{sN}, 1
    s_add_u32 s{sS}, s{sS}, 3
    s_cmp_lt_u32 s{sS}, 64
    s_cbranch_scc1 L_F_LOOP""")
    stamp(A, 3, WK+50)
    A("s_endpgm")
```

```python
from common import *
import common

def rotl3(x): return ((x << 1) & 7) | (x >> 2)
def rotr3(x): return (x >> 1) | ((x & 1) << 2)

def gen_P(A):
    A.label('L_ROLE_P')
    W = WRegs(80)
    mk_srd(A, SR0, PWQ, 576*8192); mk_srd(A, SR1, PWK, 576*8192); mk_srd(A, SR2, PWV, 576*8192)
    sLds, sT, sSrc, sN, sOut, sH, sFl, sC = 70, 71, 72, 73, 74, 75, 76, 77
    vDma, vTrQK, vTrV, vL16, vSt, vZ, vT0, vT1, vT2 = 1, 2, 3, 4, 5, 6, 7, 8, 9
    A(f"""v_mov_b32 v{vZ}, 0
    s_lshl_b32 s{sFl}, s{sCU}, 1
    s_add_u32 s{sFl}, s{sFl}, s{sSUB}
    s_lshl_b32 s{sFl}, s{sFl}, 6
    s_add_u32 s{sFl}, s{sFl}, {FP}
    v_lshlrev_b32 v{vL16}, 4, v0
    s_mov_b64 exec, 15
    buffer_store_dword v{vZ}, v{vL16}, {WS}, s{sFl} offen sc1
    s_mov_b64 exec, -1
    s_lshl_b32 s{sT}, s{sW}, 4
    s_add_u32 s{sFl}, s{sFl}, s{sT}""")
    vTrQK2, vTrV2 = 11, 12
    A(f"""v_lshrrev_b32 v{vT0}, 4, v0
    v_lshlrev_b32 v{vDma}, 13, v{vT0}
    v_and_b32 v{vT0}, 15, v0
    v_lshl_add_u32 v{vDma}, v{vT0}, 4, v{vDma}
    s_lshl_b32 s{sLds}, s{sW}, 12
    s_lshl_b32 s{sSrc}, s{sCU}, 8
    s_lshl_b32 s{sT}, s{sW}, 17
    s_add_u32 s{sSrc}, s{sSrc}, s{sT}
    v_lshrrev_b32 v{vT0}, 5, v0
    v_lshlrev_b32 v{vT0}, 3, v{vT0}
    v_bfe_u32 v{vT1}, v0, 2, 2
    v_add_u32 v{vT0}, v{vT0}, v{vT1}
    v_lshlrev_b32 v{vT0}, 8, v{vT0}
    s_lshl_b32 s{sT}, s{sW}, 6
    v_add_u32 v{vT0}, s{sT}, v{vT0}
    v_bfe_u32 v{vT1}, v0, 4, 1
    v_lshl_add_u32 v{vT0}, v{vT1}, 5, v{vT0}
    v_and_b32 v{vT1}, 3, v0
    v_lshl_add_u32 v{vTrV}, v{vT1}, 3, v{vT0}
    v_and_b32 v{vT1}, 1, v0
    v_lshl_add_u32 v{vT0}, v{vT1}, 4, v{vT0}
    v_bfe_u32 v{vT1}, v0, 1, 1
    v_lshl_add_u32 v{vTrQK}, v{vT1}, 3, v{vT0}""")
    A(f"""v_lshrrev_b32 v15, 1, v0
    v_lshlrev_b32 v15, 13, v15
    v_and_b32 v16, 1, v0
    v_lshl_add_u32 v15, v16, 7, v15
    s_and_b32 s71, s{sCU}, 3
    s_lshl_b32 s71, s71, 2
    s_lshr_b32 s79, 0x21f0, s71
    s_and_b32 s79, s79, 15
    s_mul_i32 s71, s{sW}, 3
    s_add_u32 s79, s79, s71
    s_and_b32 s78, s{sCU}, 28
    s_add_u32 s78, s78, 1
    s_lshl_b32 s78, s78, 8""")
    rounds = []
    for m_, (srd, vtr) in enumerate([(SR1, vTrQK), (SR2, vTrV), (SR0, vTrQK)]):
        for r in range(9):
            def rd(so, m_=m_, r=r, vtr=vtr):
                A(f"v_add_u32 v{vT2}, {so}, v{vtr}")
                for ga in range(4):
                    base = (m_*36 + 4*r + ga)*4
                    for j in range(2): A(f"ds_read_b64_tr_b16 {W(base+2*j, 2)}, v{vT2} offset:{ga*4096 + j*1024}")
            rounds.append(dict(dma=[(srd, vDma, sSrc, (64*r + 4*q)*8192, q*1024) for q in range(4)], reads=rd, touch=(srd, 78, 64*r*8192)))
    load_coop(A, rounds, 9, 16384, sLds, sT, depth=common.LDEP, look=common.LOOK, vT=15, vD=16, help_=(79, 78) if common.HELP else None, hooks={3: lambda: arrive_init(A, vT0, vZ), 22: lambda: code_touch(A, 'L_P_LOADED', 'L_P_END', 13, 14, 1)})
    A.label('L_P_LOADED')
    stamp(A, 1, vT0)
    wait_counter(A, D_H1, 64, vT0, vZ, sC, 0x12)
    A("s_barrier")
    stamp(A, 2, vT0)
    A(f"""v_and_b32 v{vT0}, 31, v0
    v_lshlrev_b32 v{vSt}, 4, v{vT0}
    v_lshrrev_b32 v{vT0}, 5, v0
    v_lshl_add_u32 v{vSt}, v{vT0}, 10, v{vSt}
    s_mul_i32 s{sH}, s{sSUB}, 36864
    s_mul_i32 s{sT}, s{sW}, 9216
    s_add_u32 s{sH}, s{sH}, s{sT}
    s_add_u32 s{sH}, s{sH}, {H1}
    s_mov_b32 s{sLds}, s{sT}
    s_lshl_b32 s{sOut}, s{sSUB}, 5
    s_add_u32 s{sOut}, s{sOut}, s{sCU}
    s_lshl_b32 s{sOut}, s{sOut}, 13
    s_lshl_b32 s{sT}, s{sW}, 11
    s_add_u32 s{sOut}, s{sOut}, s{sT}
    s_mov_b32 s{sN}, s{sSUB}
    s_cmp_eq_u32 s{sSUB}, 0
    s_cselect_b32 s79, {common.PSW}, 64""")
    vRd = 10
    def dma_h(buf_toggle):
        for i in range(9):
            A(f"s_add_u32 m0, s{sLds}, {i*1024}")
            A(f"s_add_u32 s{sT}, s{sH}, {i*1024}")
            A(f"buffer_load_dwordx4 v{vL16}, {WS}, s{sT} offen sc1 lds")
    dma_h(0)
    A(f"v_mov_b32 v{vRd}, v{vL16}")
    A(f"s_waitcnt vmcnt(0)")
    ACC = {0: 32, 1: 48, 2: 64}
    BF = [16, 20, 24, 28]
    A.label('L_P_LOOP')
    A("s_waitcnt vmcnt(6)")
    A("s_barrier")
    A(f"""s_xor_b32 s{sLds}, s{sLds}, 0x10000
    s_cmp_lt_u32 s{sN}, {common.PSW - 1}
    s_cselect_b32 s78, 2, 1
    s_mul_i32 s{sT}, s78, 36864
    s_add_u32 s{sH}, s{sH}, s{sT}""")
    for i in range(3):
        A(f"ds_read_b128 {v(BF[i],4)}, v{vRd} offset:{i*1024}")
    for ks in range(36):
        if ks + 3 < 36:
            A(f"ds_read_b128 {v(BF[(ks+3)%4],4)}, v{vRd} offset:{(ks+3)*1024}")
        rem = min(3, 35 - ks)
        A(f"s_waitcnt lgkmcnt({rem})")
        b = v(BF[ks % 4], 4)
        for m_ in range(3):
            w = W((m_*36 + ks)*4, 4)
            d = v(ACC[m_], 16)
            c = '0' if ks == 0 else d
            if m_ == 1: A(f"v_mfma_f32_32x32x16_bf16 {d}, {b}, {w}, {c}")
            else:       A(f"v_mfma_f32_32x32x16_bf16 {d}, {w}, {b}, {c}")
        if 12 <= ks < 30 and ks % 2 == 0:
            i = (ks - 12) // 2
            A(f"s_add_u32 m0, s{sLds}, {i*1024}")
            A(f"s_add_u32 s{sT}, s{sH}, {i*1024}")
            A(f"buffer_load_dwordx4 v{vL16}, {WS}, s{sT} offen sc1 lds")
        if ks == 11:
            A(f"""s_waitcnt vmcnt(0)
            v_mov_b32 v{vT0}, s{sN}
            buffer_store_dword v{vT0}, v{vZ}, {WS}, s{sFl} offen sc1""")
    A(f"v_xor_b32 v{vRd}, 0x10000, v{vRd}")
    A.nop(9)
    def pack_qk(acc, tmp):
        for x in range(8):
            A(f"v_cvt_pk_bf16_f32 v{tmp+rotl3(x)}, v{acc+x}, v{acc+8+x}")
    pack_qk(ACC[0], 16)
    A(f"s_add_u32 s{sT}, s{sOut}, {KB}")
    A(f"buffer_store_dwordx4 {v(16,4)}, v{vSt}, {WS}, s{sT} offen sc1")
    A(f"buffer_store_dwordx4 {v(20,4)}, v{vSt}, {WS}, s{sT} offen offset:512 sc1")
    for y in range(8):
        A(f"v_cvt_pk_bf16_f32 v{24+y}, v{ACC[1]+2*y}, v{ACC[1]+2*y+1}")
    A(f"s_add_u32 s{sT}, s{sOut}, {VB}")
    A(f"buffer_store_dwordx4 {v(24,4)}, v{vL16}, {WS}, s{sT} offen sc1")
    A(f"buffer_store_dwordx4 {v(28,4)}, v{vL16}, {WS}, s{sT} offen offset:1024 sc1")
    pack_qk(ACC[2], ACC[0])
    A(f"s_add_u32 s{sT}, s{sOut}, {QB}")
    A(f"buffer_store_dwordx4 {v(ACC[0],4)}, v{vSt}, {WS}, s{sT} offen sc1")
    A(f"buffer_store_dwordx4 {v(ACC[0]+4,4)}, v{vSt}, {WS}, s{sT} offen offset:512 sc1")
    A(f"""s_lshl_b32 s{sT}, s78, 18
    s_add_u32 s{sOut}, s{sOut}, s{sT}
    s_add_u32 s{sN}, s{sN}, s78
    s_cmp_lt_u32 s{sN}, s79
    s_cbranch_scc1 L_P_LOOP
    s_waitcnt vmcnt(0)
    v_mov_b32 v{vT0}, 64
    buffer_store_dword v{vT0}, v{vZ}, {WS}, s{sFl} offen sc1""")
    stamp(A, 3, vT0)
    A("s_endpgm")
    A.label('L_P_END')

def arrive_init(A, vt, vz, n=1, cond=None):
    l = A.newlab('AI')
    A(f"""{cond or f's_cmp_lg_u32 s{sW}, 0'}
    s_cbranch_scc1 {l}
    v_mov_b32 v{vt}, {n}
    s_mov_b64 exec, 1
    buffer_atomic_add v{vt}, v{vz}, {DBG}, 0 offen offset:{D_INIT}
    s_mov_b64 exec, -1""")
    A.label(l)
```
